```python
import torch

def _softmax(x, axis=-1):
    return torch.softmax(x, dim=axis)
def _gelu(x):
    return torch.nn.functional.gelu(x, approximate="tanh")
def _silu(x):
    return torch.nn.functional.silu(x)
def _sigmoid(x):
    return torch.sigmoid(x)
def _layernorm(x, axis=-1, eps=1e-5):
    m = x.mean(dim=axis, keepdim=True)
    v = x.var(dim=axis, keepdim=True, unbiased=False)
    return (x - m) / torch.sqrt(v + eps)
def _scatter_add(tgt, idx, src, axis=0):
    return tgt.clone().index_add_(axis, idx, src)
def _segment_sum(src, seg, n):
    out = torch.zeros((n,) + src.shape[1:], dtype=src.dtype)
    return out.index_add_(0, seg, src)
def _pad(x, pw):
    flat = tuple(v for pair in reversed(pw) for v in pair)
    return torch.nn.functional.pad(x, flat)

kernel_name = 'gated_mix__linear_attn_block__glu_gated_bilinear__prompt'

def setup_inputs():

    _w = (lambda a: (lambda t: t.to(torch.bfloat16) if t.is_floating_point() else t)(torch.as_tensor(a)))
    def _A_setup():
        B, S, D = 1, 2048, 576
        return {
            "x": _w((lambda *s: torch.randn(*s, dtype=torch.bfloat16) * 0.05)(B, S, D)),
            "wqkv": _w((lambda *s: torch.randn(*s, dtype=torch.bfloat16) * 0.8)(D, 3 * D)),
            "wo": _w((lambda *s: torch.randn(*s, dtype=torch.bfloat16) * 0.05)(D, D)),
        }
    _A_in = _A_setup()

    def _B_setup():
        B, S, D, F = 1, 2048, 576, 4608
        return {
            "x": _w((lambda *s: torch.randn(*s, dtype=torch.bfloat16) * 0.05)(B, S, D)),
            "w_gate": _w((lambda *s: torch.randn(*s, dtype=torch.bfloat16) * 1.6)(D, F) * (D ** -0.5)),
            "w_up": _w((lambda *s: torch.randn(*s, dtype=torch.bfloat16) * 1.6)(D, F) * (D ** -0.5)),
            "w_down": _w((lambda *s: torch.randn(*s, dtype=torch.bfloat16) * 1.6)(F, D) * (F ** -0.5)),
        }
    _B_in = _B_setup()

    return {
        "A_x": _A_in["x"],
        "A_wqkv": _A_in["wqkv"],
        "A_wo": _A_in["wo"],
        "B_x": _B_in["x"],
        "B_w_gate": _B_in["w_gate"],
        "B_w_up": _B_in["w_up"],
        "B_w_down": _B_in["w_down"],
        "gate_w": _w((lambda *s: torch.randn(*s, dtype=torch.bfloat16) * 0.05)(576) * 16.0),
    }

def reference(A_x, A_wqkv, A_wo, B_x, B_w_gate, B_w_up, B_w_down, gate_w):
    def _A_ref(x, wqkv, wo):
        B, S, D = x.shape
        H = 32; Dh = D // H
        qkv = (lambda x, *d: x.permute(*d))((x @ wqkv).reshape(B, S, 3, H, Dh), 2, 0, 3, 1, 4)
        q, k, v = qkv[0], qkv[1], qkv[2]
        phi = lambda t: torch.where(t > 0, t + 1, torch.exp(t)) + 1e-6
        pq, pk = phi(q), phi(k)
        kv = torch.einsum("bhsd,bhse->bhde", pk, v)
        z = torch.einsum("bhsd->bhd", pk)
        num = torch.einsum("bhqd,bhde->bhqe", pq, kv)
        den = torch.einsum("bhqd,bhd->bhq", pq, z)[..., None] + 1e-6
        o = num / den
        return (lambda x, *d: x.permute(*d))(o, 0, 2, 1, 3).reshape(B, S, D) @ wo

    def _B_ref(x, w_gate, w_up, w_down):
        g = torch.einsum("bsd,df->bsf", x, w_gate)
        u = torch.einsum("bsd,df->bsf", x, w_up)
        h = g * u
        return torch.einsum("bsf,fd->bsd", h, w_down)

    x = A_x
    g = _sigmoid((x * gate_w).sum(-1, keepdims=True))
    a = _A_ref(x, A_wqkv, A_wo)
    b = _B_ref(x, B_w_gate, B_w_up, B_w_down)
    return g * a + (1 - g) * b
```

```python
import re

REG_RE = re.compile(r'\b([vas])\[(\d+):(\d+)\]|\b([vas])(\d+)\b|\b(vcc|exec|m0|scc)\b')

def regs_of(op):
    out = []
    for m in REG_RE.finditer(op):
        if m.group(1):
            out += [f'{m.group(1)}{i}' for i in range(int(m.group(2)), int(m.group(3)) + 1)]
        elif m.group(4):
            out.append(f'{m.group(4)}{m.group(5)}')
        else:
            out.append(m.group(6))
    return out

TRANS = ('v_exp_f32', 'v_log_f32', 'v_rcp_f32', 'v_rsq_f32', 'v_sqrt_f32')

class I:
    __slots__ = ('text', 'op', 'kind', 'rd', 'wr', 'tag', 'need', 'cost', 'srcC', 'wide', 'raw', 'own')
    def __init__(self, text, tag=None, need=None):
        self.text = text.strip()
        self.tag = tag
        self.need = need
        self.srcC = []
        self.wide = False
        self.raw = False
        self.own = None
        t = self.text
        if t.endswith(':') or t.startswith('.') or t.startswith(';'):
            self.op, self.kind, self.rd, self.wr, self.cost = t, 'label', [], [], 0
            return
        if t == '@need':
            self.op, self.kind, self.rd, self.wr, self.cost = t, 'need', [], [], 1
            return
        parts = t.split(None, 1)
        op = parts[0]
        self.op = op
        rest = parts[1] if len(parts) > 1 else ''
        ops = [x.strip() for x in rest.split(',')] if rest else []
        R = [regs_of(x) for x in ops]
        flat = lambda l: [r for x in l for r in x]
        self.cost = 1
        if op.startswith('v_mfma'):
            self.kind = 'mfma'; self.wr = R[0]; self.rd = flat(R[1:]); self.srcC = R[3]; self.cost = 2
        elif op.startswith('buffer_') or op.startswith('global_'):
            lds = re.search(r'\blds\b', rest) is not None
            if op in ('buffer_inv', 'buffer_wbl2'):
                self.kind = 'vstore'; self.wr = []; self.rd = []
            elif 'load' in op and lds:
                self.kind = 'dma'; self.wr = []; self.rd = flat(R) + ['m0']
            elif 'load' in op:
                self.kind = 'vload'; self.wr = R[0]; self.rd = flat(R[1:])
            elif 'atomic' in op and re.search(r'\bsc0\b', rest):
                self.kind = 'vload'; self.wr = R[0]; self.rd = flat(R)
            else:
                self.kind = 'vstore'; self.wr = []; self.rd = flat(R)
                self.wide = op.endswith('x3') or op.endswith('x4')
                self.srcC = R[0] if op.startswith('buffer_') else R[1]
        elif op.startswith('ds_'):
            if op.startswith('ds_read') or op.startswith('ds_bpermute') or op.startswith('ds_swizzle'):
                self.kind = 'dsr'; self.wr = R[0]; self.rd = flat(R[1:])
            else:
                self.kind = 'dsw'; self.wr = []; self.rd = flat(R)
        elif op.startswith('v_'):
            self.kind = 'valu'
            if op.startswith('v_cmp'):
                self.wr = R[0]; self.rd = flat(R[1:])
            elif op.startswith('v_permlane') or op.startswith('v_swap'):
                self.wr = flat(R); self.rd = flat(R)
            elif op.startswith('v_fmac') or op.startswith('v_writelane'):
                self.wr = R[0]; self.rd = flat(R)
            elif op.startswith('v_cndmask') and len(ops) == 3:
                self.wr = R[0]; self.rd = flat(R[1:]) + ['vcc']
            elif '_co_' in op:
                self.wr = R[0] + R[1]; self.rd = flat(R[2:])
            else:
                self.wr = R[0] if R else []; self.rd = flat(R[1:])
            if any(op.startswith(x) for x in TRANS): self.cost = 2
        elif op.startswith('s_'):
            self.kind = 'salu'
            if op in ('s_waitcnt', 's_barrier', 's_nop', 's_endpgm', 's_setprio', 's_sleep', 's_branch'):
                self.wr = []; self.rd = []
                self.kind = {'s_waitcnt': 'wait', 's_barrier': 'barrier', 's_nop': 'nop'}.get(op, 'salu')
            elif op.startswith('s_cbranch'):
                self.wr = []; self.rd = ['scc'] if 'scc' in op else (['vcc'] if 'vcc' in op else ['exec'])
            elif op.startswith('s_cmp'):
                self.wr = ['scc']; self.rd = flat(R)
            elif op.startswith('s_load') or op.startswith('s_memtime') or op.startswith('s_memrealtime'):
                self.kind = 'smem'; self.wr = R[0]; self.rd = flat(R[1:])
            else:
                self.wr = R[0] + ['scc']; self.rd = flat(R[1:])
                if op.startswith('s_cselect') or op.startswith('s_addc') or op.startswith('s_subb'): self.rd.append('scc')
                if op.startswith('s_mov') or op.startswith('s_cselect') or op.startswith('s_mul') or op.startswith('s_getreg') or op.startswith('s_getpc'):
                    self.wr = R[0]
        else:
            raise ValueError('unknown instr ' + t)
    def __repr__(self): return self.text

def need(*tags):
    return I('@need', need=list(tags))

def mk(x):
    if isinstance(x, I): return [x]
    if isinstance(x, str): return [I(l) for l in x.split('\n') if l.strip()]
    out = []
    for y in x: out += mk(y)
    return out

def seq(own, x):
    out = []
    for y in (x if isinstance(x, list) else [x]):
        g = mk(y)
        for i in g: i.own = own
        out.append(g)
    return out

def check_owner(res, temps, start=0):
    last = {}
    bad = 0
    for k, ins in enumerate(res):
        for r in ins.rd:
            if k >= start and r in temps and last.get(r, (None, None, 0))[0] != ins.own and not (last[r][0] is None and last[r][2] < start):
                print(f'OWNER VIOLATION: {ins.text} [{ins.own}] reads {r} last written by {last.get(r)}'); bad += 1
        for r in ins.wr:
            last[r] = (ins.own, ins.text, k)
    assert not bad

class Sched:
    def __init__(self, cap=2):
        self.bb = []
        self.gaps = {-1: []}
        self.tails = {}
        self.cap = cap
    def mfma(self, text):
        self.bb.append(I(text)); self.gaps[len(self.bb) - 1] = []
        return len(self.bb) - 1
    @property
    def n(self): return len(self.bb)
    def load(self, g): return sum(i.cost for i in self.gaps[g]) + sum(i.cost for i in self.tails.get(g, []))
    def tail_at(self, g, x):
        self.tails.setdefault(g, []).extend(mk(x))
    def at(self, g, x):
        self.gaps[g] += mk(x)
    def at_front(self, g, x):
        self.gaps[g] = mk(x) + self.gaps[g]
    def place(self, x, lo, hi, atomic_groups=None):
        items = [mk(y) for y in x] if not isinstance(x, str) else [[i] for i in mk(x)]
        n = len(items)
        if n == 0: return lo
        lo = max(lo, -1); hi = min(hi, self.n - 1)
        assert hi >= lo, (lo, hi)
        cur = lo
        span = hi - lo + 1
        for k, it in enumerate(items):
            want = lo + (k * span) // n
            g = max(cur, want)
            c = sum(i.cost for i in it)
            lim = min(hi, lo + ((k + 1) * span) // n + 2)
            best = None
            for gg in range(g, max(g, lim) + 1):
                if gg > hi: break
                if gg == -1 or self.load(gg) + c <= self.cap:
                    best = gg; break
            if best is None:
                cands = [gg for gg in range(g, max(g, lim) + 1) if gg <= hi]
                best = min(cands, key=lambda gg: (self.load(gg), gg))
            self.gaps[best] += it
            cur = best
        return cur
    def linear(self):
        out = list(self.gaps[-1])
        for k, m in enumerate(self.bb):
            out.append(m); out += self.gaps[k] + self.tails.get(k, [])
        return out

def finalize(seq, name='', verbose=True):
    seq = mk(seq)
    out = []
    vm = []
    lg = []
    smem = False
    nw = 0
    for ins in seq:
        if ins.kind == 'wait' and True:
            m = re.search(r'vmcnt\((\d+)\)', ins.text)
            if m:
                n = int(m.group(1)); vm = vm[len(vm) - n:] if n < len(vm) else vm
                if n == 0: vm = []
            m = re.search(r'lgkmcnt\((\d+)\)', ins.text)
            if m:
                n = int(m.group(1)); lg = lg[len(lg) - n:] if n < len(lg) else lg
                if n == 0: lg = []; smem = False
            out.append(ins); continue
        touch = set(ins.rd) | set(ins.wr)
        vneed = -1; lneed = -1
        for k, o in enumerate(vm):
            if (o.kind == 'vload' and touch & set(o.wr)) or (ins.need and o.tag in ins.need): vneed = k
        for k, o in enumerate(lg):
            if (o.kind == 'dsr' and touch & set(o.wr)) or (ins.need and o.tag in ins.need): lneed = k
        w = []
        if vneed >= 0:
            n = min(63, len(vm) - 1 - vneed); w.append(f'vmcnt({n})'); vm = vm[len(vm) - n:] if n else []
        if lneed >= 0:
            assert not smem, 'smem outstanding with counted lgkm wait ' + ins.text
            n = min(15, len(lg) - 1 - lneed); w.append(f'lgkmcnt({n})'); lg = lg[len(lg) - n:] if n else []
        if w:
            out.append(I('s_waitcnt ' + ' '.join(w))); nw += 1
        if ins.kind == 'need': continue
        if ins.kind == 'smem': smem = True
        elif smem and ins.kind != 'smem':
            pass
        out.append(ins)
        if ins.kind in ('vload', 'vstore', 'dma'): vm.append(ins)
        if ins.kind in ('dsr', 'dsw'): lg.append(ins)
    pend = set()
    for ins in out:
        if ins.kind == 'wait' and 'lgkmcnt(0)' in ins.text: pend = set()
        elif ins.kind == 'smem':
            assert not (set(ins.rd) & pend), ins.text
            pend |= set(ins.wr)
        else:
            assert not ((set(ins.rd) | set(ins.wr)) & pend), 'smem dest used before wait: ' + ins.text
    res = []
    nn = 0
    def states_since(idx):
        s = 0
        for x in res[idx + 1:]:
            if x.kind == 'label': continue
            s += (int(x.text.split()[1]) + 1) if x.kind == 'nop' else 1
        return s
    isv = lambda r: r[0] in 'va' and r != 'vcc'
    for ins in out:
        req = 0
        if ins.kind not in ('label',):
            rd, wr = set(ins.rd), set(ins.wr)
            lo = max(0, len(res) - 24)
            for k in range(len(res) - 1, lo - 1, -1):
                p = res[k]
                if p.kind == 'label': continue
                pw = set(p.wr); d = 0
                if p.kind == 'valu':
                    pv = {r for r in pw if isv(r)}; ps = pw - pv
                    if ins.kind == 'mfma' and pv & rd: d = 2
                    if ins.kind == 'valu' and ins.op.startswith(('v_readfirstlane', 'v_readlane')) and pv & rd: d = max(d, 1)
                    if ins.kind == 'valu' and (ins.op.startswith('v_permlane') or 'dpp' in ins.text or 'row_' in ins.text) and pv & rd: d = max(d, 2)
                    if p.cost == 2 and ins.kind in ('valu', 'mfma', 'vstore', 'dsw', 'vload', 'dma', 'dsr') and pv & rd: d = max(d, 1)
                    if ps & rd:
                        if ins.kind == 'valu': d = max(d, 2)
                        if ins.kind in ('vload', 'vstore', 'dma'): d = max(d, 5)
                        if ins.kind == 'salu': d = max(d, 4)
                    if 'exec' in ps and ins.kind == 'mfma': d = max(d, 4)
                elif p.kind == 'mfma':
                    if ins.kind == 'mfma':
                        ab = rd - set(ins.srcC) if set(ins.srcC) else rd
                        abl = set(regs_of(ins.text.split(',')[1]) + regs_of(ins.text.split(',')[2]))
                        if pw & abl: d = 8
                        elif pw & set(ins.srcC) and p.wr != ins.srcC: d = 6
                        elif pw & wr and p.wr != ins.wr: d = 6
                        elif pw & wr and not ins.srcC: d = 6
                    elif ins.kind in ('valu', 'vstore', 'dsw', 'vload', 'dsr', 'dma'):
                        if pw & (rd | wr): d = 8
                        if ins.kind == 'valu' and set(p.srcC) & wr: d = max(d, 3)
                elif p.kind == 'salu':
                    if 'm0' in pw and ins.kind == 'dma': d = 1
                elif p.kind == 'vstore' and p.wide:
                    if set(p.srcC) & wr: d = 2
                if d:
                    s = states_since(k)
                    req = max(req, d - s)
        if req > 0:
            res.append(I(f's_nop {req - 1}')); nn += req
        res.append(ins)
    if verbose:
        cnt = {}
        for x in res: cnt[x.kind] = cnt.get(x.kind, 0) + 1
        print(f'[{name}] instrs {len(res)} {cnt} auto-waits {nw} nop-states {nn}')
    return res

def gap_report(res, cap=2):
    extra = 0; cur = None; hist = {}
    worst = []
    idx = 0
    for x in res:
        if x.kind == 'mfma':
            if cur is not None:
                hist[cur] = hist.get(cur, 0) + 1
                extra += max(0, cur - cap) * 4
                if cur > cap + 2: worst.append((idx, cur))
            cur = 0; idx += 1
        elif cur is not None and x.kind != 'label':
            cur += (int(x.text.split()[1]) + 1) if x.kind == 'nop' else x.cost
    return extra, dict(sorted(hist.items())), worst

def text(res):
    return '\n'.join(('' if x.kind == 'label' else '    ') + x.text for x in res) + '\n'
```

```python
import sys
from asmlib import *

H_OFF = 0
O_OFF = 0x1200000
WP_OFF = 0x1500000
WP_BYTES = 162 * 36 * 1024
G_OFF = 0x1B00000
KV_OFF = 0x1C00000
CQ_OFF = 0x1D00000
X_OFF = 0x2000000
WS_BYTES = 0x2800000
HUGE = 0x40000000
STAMP_OFF = 200 << 20

LOG2E = 0x3fb8aa3b
NLOG2E = 0xbfb8aa3b
EPS6 = 0x358637bd
MFMA = 'v_mfma_f32_16x16x32_bf16'

def srd(d, base, nbytes):
    return [f's_mov_b32 s{d}, s{base}', f's_mov_b32 s{d+1}, s{base+1}', f's_mov_b32 s{d+2}, {nbytes}', f's_mov_b32 s{d+3}, 0x00020000']

def vr(a, n): return f'v[{a}:{a+n-1}]'
def sr(a, n=4): return f's[{a}:{a+n-1}]'
def u32(x): return x & 0xffffffff

class Stamps:
    def __init__(self, on, base, maxn):
        self.on, self.base, self.n, self.maxn, self.names = on, base, 0, maxn, []
    def take(self, name):
        if not self.on: return []
        assert self.n < self.maxn
        s = self.base + 2 * self.n; self.n += 1; self.names.append(name)
        i = I(f's_memrealtime s[{s}:{s+1}]'); i.kind = 'salu'; i.wr = []
        return [i]
    def dump(self, ws, wave, koff, vt):
        if not self.on: return []
        o = ['s_waitcnt vmcnt(0) lgkmcnt(0)',
             f's_add_u32 s4, s{ws}, {STAMP_OFF + koff}', f's_addc_u32 s5, s{ws+1}, 0', f's_mov_b32 s6, {1<<20}', 's_mov_b32 s7, 0x00020000',
             's_lshl_b32 s3, s2, 2', f's_add_u32 s3, s3, s{wave}', 's_lshl_b32 s3, s3, 7', f'v_mov_b32 v{vt}, s3']
        for k in range(self.n):
            s = self.base + 2 * k
            o += [f'v_mov_b32 v{vt+2}, s{s}', f'v_mov_b32 v{vt+3}, s{s+1}',
                  f'buffer_store_dwordx2 v[{vt+2}:{vt+3}], v{vt}, s[4:7], 0 offen offset:{8*k}', 's_nop 0']
        return o

def kernel_text(name, body, vgpr, accum, sgpr=102):
    return f'''.text
.globl {name}
.p2align 8
.type {name},@function
{name}:
{body}.section .rodata,"a"
.p2align 6
.amdhsa_kernel {name}
  .amdhsa_next_free_vgpr {vgpr}
  .amdhsa_next_free_sgpr {sgpr}
  .amdhsa_accum_offset {accum}
  .amdhsa_group_segment_fixed_size 0
  .amdhsa_kernarg_size 88
  .amdhsa_user_sgpr_count 2
  .amdhsa_user_sgpr_kernarg_segment_ptr 1
  .amdhsa_system_sgpr_workgroup_id_x 1
.end_amdhsa_kernel
'''

def gen_k1(name, opt):
    diag = opt.get('diag', False)
    st = Stamps(diag, 84, 9)
    sX, sWG, sWU, sWS, sDBG, sA, sB = 4, 8, 12, 16, 20, 24, 28
    pX, pQKV, pWO, pWG, pWU, pWD, pGW, pDBG, pWS = 32, 34, 36, 40, 42, 44, 46, 48, 50
    sW, sJ, sI, sPAR2 = 52, 53, 54, 55
    sP = 56
    sW4K, sAB, sCQ, sC, sO0, sO1 = 65, 66, 67, 68, 69, 70
    sH, sHC = 71, 75
    sPT = 77
    sOo = 32
    sG, sPL, sXo = 38, 39, 3
    mG15, mPHI, mONE, mQ0 = 40, 42, 46, 48
    sRT = 77
    sF = 83
    TEMPS = {'m0', 'scc', f's{sO0}', f's{sO1}', f's{sXo}', f's{sPL}', 'v12', 'v13', 'v14', 'v15', 'v1'} | {f's{k}' for k in range(77, 84)}
    vDB, vPOLL = 0, 1
    vAF = 2; vAB = 6; vCQ = 7; vC = 8; vAC = 9; vL16 = 11; vS = 12
    WF = 16; ACC = 40; TMP = 168; XV = 200; PQ = 232; SP = 248
    def acc(f, t): return ACC + (f * 4 + t) * 4
    def xreg(ks, t):
        n = ks * 4 + t
        return f'a[{4*n}:{4*n+3}]' if n < 64 else vr(XV + 4 * (n - 64), 4)
    LDS_SCR = 131072
    LDS_KV = LDS_SCR
    LDS_T3 = LDS_SCR + 16384

    S = Sched()
    units = []
    stage_pos = []
    for stg in range(36):
        ch, sg = divmod(stg, 9)
        order = {0: range(8), 1: range(4), 2: [4, 5, 6, 7, 0, 1, 2, 3], 3: [4, 5, 6, 7]}[ch]
        nt = 2 if ch == 3 else 4
        stage_pos.append(S.n)
        for f in order:
            u = len(units); wb = WF + 8 * (u % 3)
            p0 = S.n
            for t in range(nt):
                kks = (0, 1) if t % 2 == 0 else (1, 0)
                for n_, kk in enumerate(kks):
                    a = vr(acc(f, t), 4)
                    c = '0' if (sg == 0 and n_ == 0) else a
                    wv = vr(wb + 4 * kk, 4); xv = xreg(2 * sg + kk, t)
                    swap = (ch == 1 and f != 2)
                    S.mfma(f'{MFMA} {a}, {xv if swap else wv}, {wv if swap else xv}, {c}')
            units.append((stg, ch, f, p0, S.n - 1))
    stage_pos.append(S.n)
    NP = S.n
    def sp(stg, frac=0.0):
        a, b = stage_pos[stg], stage_pos[stg + 1]
        return a + int((b - a) * frac) - 1
    def done_pos(stg, f, t):
        for (s_, ch, f_, p0, p1) in units:
            if s_ == stg and f_ == f: return p0 + 2 * t + 1
        raise KeyError
    def first_pos(stg, f, t): return done_pos(stg, f, t) - 1
    def bar_pos(stg):
        u0 = next(k for k, u in enumerate(units) if u[0] == stg)
        return units[u0 - 2][3] - 1 if u0 >= 2 else -1

    def unit_reads(u):
        stg, ch, f, p0, p1 = units[u]
        wb = WF + 8 * (u % 3)
        base = (stg % 4) * 16384
        out = []
        for kk in (0, 1):
            for h in (0, 1):
                if ch == 3:
                    ff = f - 4
                    a, off = vAC + (ff >> 1), base + kk * 8192 + h * 256 + (ff & 1) * 2048
                elif ch == 1:
                    a, off = vAF + f, base + kk * 8192 + h * 1024
                else:
                    a, off = vAF + (f >> 1), base + kk * 8192 + h * 1024 + (f & 1) * 2048
                out.append(I(f'ds_read_b64_tr_b16 {vr(wb+4*kk+2*h, 2)}, v{a} offset:{off}', f'U{u}'))
        return out
    pro_tail = []
    extra_need = {}
    extra_need[opt.get('kvbar', 22)] = ['KVW']
    extra_need[opt.get('kvbar2', 30)] = ['KVW2']
    for u in range(len(units)):
        stg = units[u][0]
        pre = []
        if u == 0 or units[u - 1][0] != stg:
            pre = [[need(f'W{stg}', *extra_need.get(stg, [])), 's_barrier']]
            if stg % 4 == 0 and stg > 0:
                regs = [vAF + k for k in range(4)] if stg < 27 else [vAC, vAC + 1]
                pre += [[f'v_xor_b32 v{r}, 0x10000, v{r}'] for r in regs]
        if u < 2:
            pro_tail += pre + unit_reads(u)
        else:
            _, _, _, p0, p1 = units[u - 2]
            if pre: S.at(p0 - 1, pre[0])
            S.place(pre[1:] + unit_reads(u), p0, p1 - 1)
        if u > 0: S.tail_at(units[u][3] - 1, need(f'U{u}'))

    def dma_group(stg):
        ch, sg = divmod(stg, 9)
        tag = f'W{stg}'
        m0 = f's_add_u32 m0, s{sW4K}, {(stg % 8) * 16384}'
        if ch in (0, 2):
            o = [m0, f's_mul_i32 s{sO0}, s{sP+sg}, 589824', f's_add_u32 s{sO0}, s{sO0}, s{sAB}',
                 I(f'buffer_load_dwordx4 v{vAB}, {sr(sWG)}, s{sO0} offen lds', tag),
                 f's_add_u32 s{sO1}, s{sO0}, {36864-1024}',
                 I(f'buffer_load_dwordx4 v{vAB}, {sr(sWU)}, s{sO0} offen offset:2048 lds', tag),
                 I(f'buffer_load_dwordx4 v{vAB}, {sr(sWG)}, s{sO1} offen offset:1024 lds', tag),
                 I(f'buffer_load_dwordx4 v{vAB}, {sr(sWU)}, s{sO1} offen offset:3072 lds', tag)]
            if stg == 8: o.append(f's_add_u32 s{sAB}, s{sAB}, 128')
        elif ch == 1:
            o = [m0, f's_lshl_b32 s{sO0}, s{sP+sg}, 13', f's_add_u32 s{sO0}, s{sO0}, s{sCQ}',
                 I(f'buffer_load_dwordx4 v{vCQ}, {sr(sWS)}, s{sO0} offen sc1 lds', tag),
                 f's_sub_u32 s{sO1}, s{sO0}, 512',
                 I(f'buffer_load_dwordx4 v{vCQ}, {sr(sWS)}, s{sO1} offen offset:1024 sc1 lds', tag)]
        else:
            o = [m0, f's_mul_i32 s{sO0}, s{sP+sg}, 589824', f's_add_u32 s{sO0}, s{sO0}, s{sC}',
                 I(f'buffer_load_dwordx4 v{vC}, {sr(sWG)}, s{sO0} offen lds', tag),
                 I(f'buffer_load_dwordx4 v{vC}, {sr(sWU)}, s{sO0} offen offset:2048 lds', tag)]
        return seq(tag, o)
    vXO = PQ
    def x_group(sg):
        o = [f's_lshl_b32 s{sXo}, s{sP+sg}, 7']
        for t in range(4):
            for kk in (0, 1):
                o.append(f'buffer_load_dwordx4 {xreg(2*sg+kk, t)}, v{vXO+t}, {sr(sX)}, s{sXo} offen offset:{64*kk}')
        return seq(f'X{sg}', o)
    XD = opt.get('xdist', 2)
    for sg in range(XD, 9):
        s0 = sg - XD
        S.place(dma_group(sg) + x_group(sg), sp(s0, 0.0) + 1, sp(s0, 0.95))

    RT = TMP
    vRTs, vRTd, vRTg = TMP + 16, TMP + 17, TMP + 18
    rt_rows = [0, 4, 8, 12, 14]
    rt_proc = []
    for n_, r0 in enumerate(rt_rows):
        d = RT + 2 * n_; g_ = RT + 10 + n_
        rt_proc += [f'v_cndmask_b32 v{d}, v{d}, v{g_}, {sr(mG15,2)}', f'v_cndmask_b32 v{d+1}, v{d+1}, 0, {sr(mG15,2)}',
                    I(f'buffer_store_dwordx2 {vr(d,2)}, v{vRTd}, {sr(sWS)}, s{sRT} offen offset:{r0*128} sc1', 'CQ')]
    RS = opt.get('rtstage', 1)
    S.place(seq('RT', rt_proc), sp(RS, 0.1), sp(RS, 0.9))
    def signal(tag, off):
        return seq('SIG' + tag, [f'v_mov_b32 v{vPOLL}, 1', [need(tag), f'buffer_atomic_add v{vPOLL}, v{vDB}, {sr(sDBG)}, 0 offen offset:{off} sc1']])
    S.place(signal('CQ', 0), sp(RS + 2, 0.5), sp(RS + 2, 0.55))
    slow = []
    def poll_load(off): return f'buffer_load_dword v{vPOLL}, v{vDB}, {sr(sDBG)}, 0 offen offset:{off} sc1'
    def poll(lbl, off, pos_load, pos_chk):
        nonlocal slow
        slow += [f'L_slow_{lbl}:', f's_mov_b32 s{sO1}, 20000', f'L_spin_{lbl}:', poll_load(off), 's_waitcnt vmcnt(0)',
                 f'v_readfirstlane_b32 s{sPL}, v{vPOLL}', 's_nop 3', f's_sub_u32 s{sO1}, s{sO1}, 1', f's_cmp_eq_u32 s{sO1}, 0',
                 f's_cbranch_scc1 L_ok_{lbl}', f's_cmp_ge_u32 s{sPL}, 32', f's_cbranch_scc0 L_spin_{lbl}', f's_branch L_ok_{lbl}']
        S.at(pos_load, seq('PL' + lbl, [poll_load(off)]))
        S.at(pos_chk, seq('PL' + lbl, [f'v_readfirstlane_b32 s{sPL}, v{vPOLL}']))
        S.at(pos_chk + 2, seq('PL' + lbl, [f's_mov_b32 s{sO1}, 0', f's_cmp_ge_u32 s{sPL}, 32', f's_cbranch_scc0 L_slow_{lbl}', f'L_ok_{lbl}:']))
    poll('cq', 0, sp(6, 0.5), sp(7, 0.0) + 1)
    iss = {9: (7, .12, .45), 10: (7, .55, .9), 11: (8, .0, .25), 12: (8, .33, .58), 13: (8, .66, .92),
           14: (9, 0, .4), 15: (10, 0, .4), 16: (11, 0, .4), 17: (12, 0, .4), 18: (12, .5, .95)}
    for s_ in range(19, 36): iss[s_] = (s_ - 6, .05, .9)
    for s_, (s0, fa, fb) in sorted(iss.items()):
        lo = max(sp(s0, fa) + 1, bar_pos(s_ - 6) + 1)
        hi = max(lo, sp(s0, fb))
        assert hi < bar_pos(s_), s_
        S.place(dma_group(s_), lo, hi)

    def ffn_epi(stg, pairs, nts, soff, limit):
        items = []
        for (fe, fo, imm) in pairs:
            for k_, f in enumerate((fe, fo)):
                for t in range(nts):
                    g_, u_ = acc(f, t), acc(f + 1, t)
                    dst = acc(fe + 1, t) + 2 * k_
                    sq = [f'v_mul_f32 v{g_+r}, v{g_+r}, v{u_+r}' for r in range(4)]
                    sq += [f'v_cvt_pk_bf16_f32 v{dst}, v{g_}, v{g_+1}', f'v_cvt_pk_bf16_f32 v{dst+1}, v{g_+2}, v{g_+3}']
                    if k_ == 1:
                        sq += [f'buffer_store_dwordx4 {vr(acc(fe+1,t),4)}, v{vL16}, {sr(sWS)}, s{soff+t} offen offset:{imm} sc1']
                    items.append((done_pos(stg, f + 1, t) + 4, limit(fe), sq))
        cur = -1
        for lo, hi, sq in items:
            lo = max(lo, cur)
            if lo >= NP - 1:
                S.at(NP - 1, sq); cur = NP - 1; continue
            cur = S.place(sq, lo, max(lo, min(hi, lo + 4)))
            assert cur <= hi or hi >= NP - 1, (stg, cur, hi)
    ffn_epi(8, [(0, 2, 0), (4, 6, 1024)], 4, sH, lambda fe: (first_pos(9, 0, 0) - 2) if fe == 0 else sp(10, 0.5))

    PTB = acc(4, 0)
    vPA = acc(6, 0)
    vPV = acc(6, 0) + 4
    sU, sKB, sCG, sD0, sD1, sLB, sTY = [sPT + k for k in range(7)]
    pt = [f's_lshl_b32 s{sU}, s2, 2', f's_add_u32 s{sU}, s{sU}, s{sW}',
          f'v_lshrrev_b32 v{vS}, 7, v{vL16}',
          f'v_lshrrev_b32 v{vS+1}, 1, v{vS}', f'v_lshlrev_b32 v{vS+1}, 5, v{vS+1}',
          f'v_and_b32 v{vS+2}, 0x70, v{vL16}', f'v_xor_b32 v{vS+1}, v{vS+1}, v{vS+2}',
          f'v_mul_u32_u24 v{vPV}, 1152, v{vS}', f'v_add_u32 v{vPV}, v{vPV}, v{vS+1}',
          f'v_lshrrev_b32 v{vS}, 2, v{vS}', f'v_mul_u32_u24 v{vPV+2}, {4*1152}, v{vS}',
          f's_lshr_b32 s{sLB}, s{sW}, 1', f's_lshl_b32 s{sLB}, s{sLB}, 13', f's_and_b32 s{sKB}, s{sW}, 1', f's_lshl_b32 s{sKB}, s{sKB}, 11',
          f's_add_u32 s{sLB}, s{sLB}, s{sKB}', f's_add_u32 s{sLB}, s{sLB}, {LDS_SCR}']
    def pt_idx(dst):
        return [f's_mul_hi_u32 s{sKB}, s{sU}, {(2**32 + 8)//9}', f's_mul_i32 s{sCG}, s{sKB}, 9', f's_sub_u32 s{sCG}, s{sU}, s{sCG}',
                f's_mul_i32 s{dst}, s{sKB}, 9', f's_add_u32 s{dst}, s{dst}, s{sCG}', f's_lshl_b32 s{dst}, s{dst}, 12',
                f's_add_u32 s{dst}, s{dst}, {WP_OFF}', f's_lshl_b32 s{sCG}, s{sCG}, 7']
    rh = [0, 16, 8, 24]; ro = [0, 4, 16, 20]
    pt += pt_idx(sD0) + srd(sA, pWD, 4608 * 1152)
    pt += [f's_mul_i32 s{sKB}, s{sKB}, {32*1152}', f's_add_u32 s{sKB}, s{sKB}, s{sCG}']
    pt_dma0 = []
    for n_ in (0, 2):
        pt_dma0.append([f's_add_u32 m0, s{sLB}, {(n_//2)*4096}', f's_add_u32 s{sCG}, s{sKB}, {rh[n_]*1152}',
                        I(f'buffer_load_dwordx4 v{vPV}, {sr(sA)}, s{sCG} offen lds', 'PT0'),
                        f's_add_u32 s{sCG}, s{sKB}, {rh[n_+1]*1152 - 1024}',
                        I(f'buffer_load_dwordx4 v{vPV}, {sr(sA)}, s{sCG} offen offset:1024 lds', 'PT0')])
    pt1 = [f's_add_u32 s{sU}, s{sU}, 1024'] + pt_idx(sD1)
    pt1 += [f's_mov_b32 s{sB+2}, {4608*1152}',
            [f's_cmp_ge_u32 s{sKB}, 144', f's_cselect_b32 s{sB}, s{pWO}, s{pWD}', f's_cselect_b32 s{sB+1}, s{pWO+1}, s{pWD+1}',
             f's_cselect_b32 s{sB+2}, {576*1152}, s{sB+2}', f's_cselect_b32 s{sTY}, 1, 0'],
            f's_mov_b32 s{sB+3}, 0x00020000',
            [f's_cmp_ge_u32 s{sU}, 1458', f's_cselect_b32 s{sB+2}, 0, s{sB+2}', f's_cselect_b32 s{sD1}, {HUGE}, s{sD1}'],
            f's_mul_i32 s{sU}, s{sTY}, 144', f's_sub_u32 s{sKB}, s{sKB}, s{sU}',
            f's_mul_i32 s{sKB}, s{sKB}, {32*1152}', f's_add_u32 s{sKB}, s{sKB}, s{sCG}',
            f'v_mul_u32_u24 v{vPV+1}, s{sTY}, v{vPV+2}', f'v_add_u32 v{vPV+1}, v{vPV+1}, v{vPV}']
    pt_dma1 = []
    for n_ in (0, 2):
        g = [f's_add_u32 m0, s{sLB}, {16384 + (n_//2)*4096}']
        for e in (0, 1):
            n2 = n_ + e
            g += [f's_mul_i32 s{sCG}, s{sTY}, {u32((ro[n2] - rh[n2]) * 1152)}', f's_add_u32 s{sCG}, s{sCG}, s{sKB}',
                  f's_add_u32 s{sCG}, s{sCG}, {u32(rh[n2]*1152 - e*1024)}',
                  I(f'buffer_load_dwordx4 v{vPV+1}, {sr(sB)}, s{sCG} offen offset:{e*1024} lds', 'PT1')]
        pt_dma1.append(g)
    S.place(seq('PT', pt), sp(10, 0.55), sp(10, 0.98))
    S.place(seq('PT', pt_dma0), sp(11, 0.5), sp(11, 0.7))
    S.place(seq('PT', pt1), sp(11, 0.72), sp(12, 0.4))
    S.at(sp(13, 0.0), seq('PT', pt_dma1[0])); S.at(sp(13, 0.95), seq('PT', pt_dma1[1]))
    pt_rd = []
    for k in range(4):
        pt_rd += [f'v_and_b32 v{vPA+k}, 0xffff, v{vAF+k}', f'v_add_u32 v{vPA+k}, s{sLB}, v{vPA+k}']
    S.place(seq('PT', pt_rd), sp(14, 0.0), sp(14, 0.9))
    for un in range(2):
        o = [need(f'PT{un}')]
        for f in range(4):
            for h in (0, 1):
                o.append(f'ds_read_b64_tr_b16 {vr(PTB+16*un+4*f+2*h, 2)}, v{vPA+f} offset:{un*16384 + h*1024}')
        for f in range(4):
            o.append(f'buffer_store_dwordx4 {vr(PTB+16*un+4*f, 4)}, v{vL16}, {sr(sWS)}, s{(sD0, sD1)[un]} offen offset:{f*1024} sc1')
        S.place(seq('PT', o), sp(15 + un, 0.0), sp(15 + un, 0.95) if un == 0 else sp(17, 0.3))
    fill = [f'v_mov_b32 v{SP+k}, -1' for k in range(4)]
    fill += [f's_lshl_b32 s{sXo}, s2, 2', f's_add_u32 s{sXo}, s{sXo}, s{sW}', f's_mul_i32 s{sXo}, s{sXo}, 6912', f's_add_u32 s{sXo}, s{sXo}, {X_OFF}']
    for k in range(7):
        if k == 4: fill.append(f's_add_u32 s{sXo}, s{sXo}, {4096 - 256}')
        fill.append(f'buffer_store_dwordx4 {vr(SP,4)}, v{vL16}, {sr(sWS)}, s{sXo} offen offset:{(k%4)*1024} sc1')
    S.place(seq('FILL', fill), sp(7, 0.1), sp(8, 0.2))

    T0, T1, T3A, T3B = TMP, TMP + 8, TMP + 16, TMP + 24
    cur = -1
    for f in range(4):
        for t in range(4):
            d = {0: T0 + 2 * t, 1: T1 + 2 * t, 2: PQ + 4 * t, 3: T3A + 2 * t}[f]
            a = acc(f, t)
            lo = max(cur, done_pos(17, f, t) + 4)
            cur = S.place([f'v_cvt_pk_bf16_f32 v{d}, v{a}, v{a+1}', f'v_cvt_pk_bf16_f32 v{d+1}, v{a+2}, v{a+3}'], lo, lo + 2)
    assert cur < first_pos(18, 0, 0) - 2
    p_att = cur + 1
    def phi(r, mask=None):
        a, b, c, d = vS, vS + 1, vS + 2, vS + 3
        o = [f'v_lshlrev_b32 v{a}, 16, v{r}', f'v_and_b32 v{b}, 0xffff0000, v{r}',
             f'v_mul_f32 v{c}, {LOG2E}, v{a}', f'v_mul_f32 v{d}, {LOG2E}, v{b}',
             f'v_exp_f32_e64 v{c}, v{c} clamp', f'v_exp_f32_e64 v{d}, v{d} clamp',
             f'v_max_f32 v{a}, {EPS6}, v{a}', f'v_max_f32 v{b}, {EPS6}, v{b}',
             f'v_add_f32 v{a}, v{a}, v{c}', f'v_add_f32 v{b}, v{b}, v{d}']
        if mask is None:
            o += [f'v_cvt_pk_bf16_f32 v{r}, v{a}, v{b}']
        else:
            o += [f'v_cvt_pk_bf16_f32 v{a}, v{a}, v{b}', f'v_cndmask_b32 v{r}, v{r}, v{a}, {sr(mask,2)}']
        return o
    att1 = []
    for k in range(8): att1 += phi(T3A + k, mPHI)
    att1 += [f'v_mov_b32 v{vS}, 0x3f803f80'] + [f'v_cndmask_b32 v{T3B+k}, v{T3A+k}, v{vS}, {sr(mONE,2)}' for k in range(8)]
    for k in range(8): att1 += phi(T0 + k)
    KE = opt.get('kvend', (21, 0.0))
    cur = S.place(seq('ATT1', att1), p_att, sp(*KE))
    kvm = []
    for (dst, A, B) in ((SP, T0, T1), (SP + 4, T3A, T1), (T1, T0, T3B), (T1 + 4, T3A, T3B)):
        kvm += [f'{MFMA} {vr(dst,4)}, {vr(A,4)}, {vr(B,4)}, 0', f'{MFMA} {vr(dst,4)}, {vr(A+4,4)}, {vr(B+4,4)}, {vr(dst,4)}']
    a_kvw = vS
    kvw = [f'v_add_u32 v{a_kvw}, s{sW4K}, v{vL16}', f'v_lshrrev_b32 v{a_kvw+1}, 2, s{sW4K}' if False else f's_lshr_b32 s{sXo}, s{sW4K}, 2',
           f'v_add_u32 v{a_kvw+1}, s{sXo}, v{vL16}', f'v_add_u32 v{a_kvw}, {LDS_KV}, v{a_kvw}', f'v_add_u32 v{a_kvw+1}, {LDS_KV}, v{a_kvw+1}']
    cur = S.place(seq('KV', kvw), cur + 1, cur + 3)
    cur = S.place(seq('KV', kvm), cur + 2, cur + 10)
    wr = [I(f'ds_write_b128 v{a_kvw+1}, {vr(src,4)} offset:{n_*4096}', 'KVW') for n_, src in enumerate((SP, SP + 4, T1, T1 + 4))]
    cur = S.place(seq('KV', wr), cur + 5, cur + 9)
    KB = opt.get('kvbar', 22)
    assert cur < bar_pos(KB) - 4, (cur, bar_pos(KB))
    t3 = [f's_lshr_b32 s{sXo}, s{sW4K}, 1', f's_add_u32 s{sXo}, s{sXo}, {LDS_T3}',
          f'v_and_b32 v{vS+2}, 0xf0, v{vL16}', f'v_lshlrev_b32 v{vS+2}, 1, v{vS+2}', f'v_lshrrev_b32 v{vS+3}, 8, v{vL16}',
          f'v_lshl_add_u32 v{vS+2}, v{vS+3}, 3, v{vS+2}', f'v_add_u32 v{vS+2}, s{sXo}, v{vS+2}']
    t3 += [f'ds_write_b64 v{vS+2}, {vr(T3A+2*t,2)} offset:{t*512}' for t in range(4)]
    t3 += [f'v_bfe_u32 v{vS+3}, v{vL16}, 6, 2', f'v_lshlrev_b32 v{vS+3}, 5, v{vS+3}', f'v_bfe_u32 v{vS+2}, v{vL16}, 4, 2',
           f'v_lshl_add_u32 v{vS+3}, v{vS+2}, 3, v{vS+3}', f'v_add_u32 v{vS+3}, s{sXo}, v{vS+3}']
    t3 += [f'ds_read_b64_tr_b16 {vr(PQ+4*t+2,2)}, v{vS+3} offset:{t*512 + 320}' for t in range(4)]
    cur = S.place(seq('KV', t3), cur + 1, bar_pos(KB) + 6)
    pub = [f'ds_read_b128 {vr(TMP+4*k,4)}, v{a_kvw} offset:{k*1024}' for k in range(4)]
    pub += [f's_lshl_b32 s{sXo}, s{sJ}, 2', f's_add_u32 s{sXo}, s{sXo}, s{sW}', f's_lshl_b32 s{sXo}, s{sXo}, 3', f's_add_u32 s{sXo}, s{sXo}, s{sI}',
            f's_lshl_b32 s{sXo}, s{sXo}, 10', f's_add_u32 s{sXo}, s{sXo}, {KV_OFF}']
    pub += [f'v_add_f32 v{TMP+r}, v{TMP+r}, v{TMP+4+r}' for r in range(4)]
    pub += [f'v_add_f32 v{TMP+8+r}, v{TMP+8+r}, v{TMP+12+r}' for r in range(4)]
    pub += [f'v_add_f32 v{TMP+r}, v{TMP+r}, v{TMP+8+r}' for r in range(4)]
    pub += [I(f'buffer_store_dwordx4 {vr(TMP,4)}, v{vL16}, {sr(sWS)}, s{sXo} offen sc1', 'KVP')]
    lo = max(cur + 1, bar_pos(KB) + 1)
    cur = S.place(seq('KV', pub), lo, lo + 16)
    p_pub = cur
    att2 = []
    for t in range(4): att2 += phi(PQ + 4 * t) + phi(PQ + 4 * t + 1)
    for t in range(4):
        g_ = PQ + 4 * t + 3
        att2 += [f'v_cndmask_b32 v{g_-1}, 0, v{g_-1}, {sr(mQ0,2)}', f'v_lshlrev_b32 v{vS}, 16, v{g_}', f'v_mul_f32 v{vS}, {NLOG2E}, v{vS}',
                 f'v_exp_f32 v{vS}, v{vS}', f'v_add_f32 v{vS}, 1.0, v{vS}', f'v_rcp_f32 v{vS}, v{vS}',
                 f'v_cvt_pk_bf16_f32 v{vS}, v{vS}, v{vS}', f'v_and_b32 v{g_}, 0xffff0000, v{vS}', f'v_sub_f32 v{vS+1}, 1.0, v{g_}',
                 f'v_bfe_u32 v{vS+2}, v{vL16}, 4, 4', f'v_lshlrev_b32 v{vS+2}, 2, v{vS+2}',
                 f'buffer_store_dword v{vS+1}, v{vS+2}, {sr(sWS)}, s{sG} offen offset:{t*64}']
    SG = opt.get('kvsig', (24, 0.1))
    S.place(signal('KVP', 128), sp(*SG), sp(*SG) + 2)
    cur = S.place(seq('ATT2', att2), cur + 1, sp(25, 0.4))
    PK = opt.get('kvpoll', (25, 0.6, 26, 0.0))
    poll('kv', 128, sp(PK[0], PK[1]), sp(PK[2], PK[3]) + 1)
    p_g = sp(PK[2], PK[3]) + 4
    gat = [f's_lshl_b32 s{sXo}, s{sJ}, 2', f's_add_u32 s{sXo}, s{sXo}, s{sW}', f's_lshl_b32 s{sXo}, s{sXo}, 13', f's_add_u32 s{sXo}, s{sXo}, {KV_OFF}']
    for k in range(8):
        if k == 4: gat.append(f's_add_u32 s{sXo}, s{sXo}, 4096')
        gat.append(f'buffer_load_dwordx4 {vr(TMP+4*k,4)}, v{vL16}, {sr(sWS)}, s{sXo} offen offset:{(k%4)*1024} sc1')
    cur = S.place(seq('GAT', gat), p_g, p_g + 14)
    ffn_epi(26, [(4, 6, 3072), (0, 2, 2048)], 4, sH, lambda fe: (first_pos(27, 4, 0) - 2) if fe == 4 else sp(30, 0.9))
    sm = []
    for (a, b) in ((0, 4), (8, 12), (16, 20), (24, 28), (0, 8), (16, 24), (0, 16)):
        sm += [f'v_add_f32 v{TMP+a+r}, v{TMP+a+r}, v{TMP+b+r}' for r in range(4)]
    sm += [f's_lshr_b32 s{sXo}, s{sW4K}, 2', f's_add_u32 s{sXo}, s{sXo}, {LDS_KV}', f'v_add_u32 v{vS}, s{sXo}, v{vL16}',
           I(f'ds_write_b128 v{vS}, {vr(TMP,4)}', 'KVW2')]
    KB2 = opt.get('kvbar2', 30)
    cur = S.place(seq('FIN', sm), sp(27, 0.5), bar_pos(KB2) - 3)
    KA = TMP + 16
    fin = [f'v_add_u32 v{vS}, {LDS_KV}, v{vL16}']
    fin += [f'ds_read_b128 {vr(TMP+4*k,4)}, v{vS} offset:{k*1024}' for k in range(4)]
    fin += [f'v_mov_b32 v{KA+3}, 0', f'v_mov_b32 v{KA+7}, 0']
    for e in range(2):
        a, b = TMP + 8 * e, TMP + 8 * e + 4
        fin += [f'v_cvt_pk_bf16_f32 v{KA+4*e}, v{a}, v{a+1}', f'v_cvt_pk_bf16_f32 v{KA+4*e+1}, v{a+2}, v{a+3}',
                f'v_cvt_pk_bf16_f32 v{KA+4*e+2}, v{b+2}, v{b+3}', f'v_cndmask_b32 v{KA+4*e+2}, 0, v{KA+4*e+2}, {sr(mQ0,2)}']
    N0 = lambda t: acc(4 + t, 2)
    N1 = lambda t: acc(4 + t, 3)
    for t in range(4):
        fin += [f'{MFMA} {vr(N1(t),4)}, {vr(KA+4,4)}, {vr(PQ+4*t,4)}, 0', f'{MFMA} {vr(N0(t),4)}, {vr(KA,4)}, {vr(PQ+4*t,4)}, 0']
    vO, vO2 = TMP, TMP + 1
    fin += [f'v_bfe_u32 v{vO}, v{vL16}, 4, 4', f'v_mul_u32_u24 v{vO}, 1152, v{vO}', f'v_lshrrev_b32 v{vS}, 8, v{vL16}',
            f'v_add_u32 v{vO2}, 32, v{vO}', f'v_lshl_add_u32 v{vO}, v{vS}, 3, v{vO}',
            f's_mov_b32 s{mONE}, 0xffff0000', f's_mov_b32 s{mONE+1}, 0', f'v_mov_b32 v{vS}, {HUGE}',
            f'v_cndmask_b32 v{vO2}, v{vS}, v{vO2}, {sr(mONE,2)}']
    for t in range(4):
        n0, n1 = N0(t), N1(t)
        fin += [f'v_add_f32 v{n1}, {EPS6}, v{n1}', f'v_rcp_f32 v{n1}, v{n1}', f'v_mul_f32 v{n1}, v{n1}, v{PQ+4*t+3}']
        fin += [f'v_mul_f32 v{n0+r}, v{n0+r}, v{n1}' for r in range(4)]
        fin += [f'v_mul_f32 v{n1+2}, v{n1+2}, v{n1}', f'v_mul_f32 v{n1+3}, v{n1+3}, v{n1}',
                f'v_cvt_pk_bf16_f32 v{n0}, v{n0}, v{n0+1}', f'v_cvt_pk_bf16_f32 v{n0+1}, v{n0+2}, v{n0+3}', f'v_cvt_pk_bf16_f32 v{n1+2}, v{n1+2}, v{n1+3}',
                f'buffer_store_dwordx2 {vr(n0,2)}, v{vO}, {sr(sWS)}, s{sOo+t} offen', f'buffer_store_dword v{n1+2}, v{vO2}, {sr(sWS)}, s{sOo+t} offen']
    S.place(seq('FIN', fin), bar_pos(KB2) + 1, NP - 2)
    ffn_epi(35, [(4, 6, 0)], 2, sHC, lambda fe: NP)

    if diag:
        for nm, g in (('A4', sp(4, 0)), ('Aend', sp(9, 0)), ('Qend', sp(18, 0)), ('B4', sp(22, 0)), ('Bend', sp(27, 0)), ('Cend', NP - 1)):
            S.at(g, st.take(nm))

    vL = 12
    P = []
    P += ['s_cmp_ge_u32 s2, 256', 's_cbranch_scc1 L_k1_end']
    P += st.take('start')
    P += ['s_load_dwordx16 s[32:47], s[0:1], 0', 's_load_dwordx4 s[48:51], s[0:1], 72',
          'v_lshrrev_b32 v1, 6, v0', f'v_and_b32 v{vL}, 63, v0', f'v_readfirstlane_b32 s{sW}, v1',
          's_and_b32 s3, s2, 7', f's_lshr_b32 s{sI}, s2, 5', f's_bfe_u32 s{sPAR2}, s2, 0x20003',
          f's_lshl_b32 s{sJ}, s3, 2', f's_add_u32 s{sJ}, s{sJ}, s{sPAR2}']
    rm = opt.get('rot', (1, 2, 1))
    P += [f's_mul_i32 s{sP}, s{sI}, {rm[0]}', f's_mul_i32 s{sO0}, s{sPAR2}, {rm[1]}', f's_add_u32 s{sP}, s{sP}, s{sO0}',
          f's_mul_i32 s{sO0}, s3, {rm[2]}', f's_add_u32 s{sP}, s{sP}, s{sO0}',
          f's_mul_i32 s{sO0}, s{sP}, 7282', f's_lshr_b32 s{sO0}, s{sO0}, 16', f's_mul_i32 s{sO0}, s{sO0}, 9', f's_sub_u32 s{sP}, s{sP}, s{sO0}']
    def nextp(k): return [f's_add_u32 s{sP+k}, s{sP+k-1}, 1', f's_cmp_eq_u32 s{sP+k}, 9', f's_cselect_b32 s{sP+k}, 0, s{sP+k}']
    P += nextp(1)
    P += [f's_and_b32 s{sPAR2}, s{sPAR2}, 1', f's_lshl_b32 s{sPAR2}, s{sPAR2}, 1',
          f'v_lshlrev_b32 v{vL16}, 4, v{vL}',
          f'v_lshrrev_b32 v13, 3, v{vL}', 'v_lshrrev_b32 v14, 2, v13', 'v_and_b32 v15, 3, v13', 'v_lshl_add_u32 v14, v14, 3, v15',
          'v_lshrrev_b32 v13, 1, v13', 'v_lshlrev_b32 v13, 5, v13', f'v_and_b32 v15, 0x70, v{vL16}', 'v_xor_b32 v13, v13, v15',
          f'v_mul_u32_u24 v{vAB}, 9216, v14', f'v_add_u32 v{vAB}, v{vAB}, v13', f'v_lshl_add_u32 v{vCQ}, v14, 7, v13',
          f'v_and_b32 v13, 15, v{vL}', 'v_mul_u32_u24 v13, 1152, v13', f'v_lshrrev_b32 v14, 4, v{vL}', 'v_lshl_add_u32 v13, v14, 4, v13',
          f's_lshl_b32 s{sW4K}, s{sW}, 12',
          f's_mul_i32 s{sAB}, s{sW}, {16*9216}', f's_lshl_b32 s{sO0}, s{sJ}, 8', f's_add_u32 s{sAB}, s{sAB}, s{sO0}',
          f's_lshl_b32 s{sO0}, s{sI}, 2', f's_add_u32 s{sO0}, s{sO0}, s{sW}', f's_lshl_b32 s{sO0}, s{sO0}, 2']
    for t in range(4):
        P += [f's_xor_b32 s{sH+t}, s{sPAR2}, {t}', f's_add_u32 s{sH+t}, s{sH+t}, s{sO0}',
              f's_mul_i32 s{sO1}, s{sH+t}, 18432', f'v_add_u32 v{vXO+t}, s{sO1}, v13']
    P += ['s_waitcnt lgkmcnt(0)']
    P += srd(sWG, pWG, 576 * 9216)
    P += [f's_sub_u32 s{sWU}, s{pWU}, 2048', f's_subb_u32 s{sWU+1}, s{pWU+1}, 0', f's_mov_b32 s{sWU+2}, {576*9216+2048}', f's_mov_b32 s{sWU+3}, 0x00020000']
    P += srd(sX, pX, 2048 * 1152)
    P += dma_group(0) + x_group(0)
    if XD >= 2: P += dma_group(1) + x_group(1)
    P += srd(sA, pQKV, 576 * 3456) + srd(sB, pGW, 1152) + srd(sWS, pWS, WS_BYTES) + srd(sDBG, pDBG, 256)
    rt = [f'v_and_b32 v13, 15, v{vL}', f'v_lshrrev_b32 v14, 4, v{vL}',
          f'v_lshlrev_b32 v{vRTg}, 1, v14', f'v_mul_u32_u24 v{vRTs}, 3456, v14', f'v_lshlrev_b32 v{vRTd}, 3, v{vL}',
          'v_cmp_gt_u32 vcc, 12, v13', 'v_lshrrev_b32 v14, 2, v13', 'v_subrev_u32 v15, 12, v13', 'v_cndmask_b32 v14, v15, v14, vcc',
          'v_and_b32 v13, 3, v13', 'v_lshlrev_b32 v13, 3, v13', 'v_cndmask_b32 v13, 28, v13, vcc',
          'v_add_u32 v14, 1, v14', 'v_subrev_u32 v15, 3, v14', 'v_min_u32 v14, v14, v15', 'v_mul_u32_u24 v14, 1152, v14',
          f'v_add3_u32 v{vRTs}, v{vRTs}, v13, v14',
          f's_mul_i32 s{sO0}, s{sI}, 72', f's_mul_i32 s{sO1}, s{sW}, 18', f's_add_u32 s{sO0}, s{sO0}, s{sO1}',
          f's_mul_i32 s{sCQ}, s{sJ}, 73728', f's_add_u32 s{sCQ}, s{sCQ}, {CQ_OFF}',
          f's_lshl_b32 s{sRT}, s{sO0}, 7', f's_add_u32 s{sRT}, s{sRT}, s{sCQ}',
          f's_lshl_b32 s{sRT+1}, s{sO0}, 1',
          f's_mul_i32 s{sO0}, s{sO0}, 3456', f's_mul_i32 s{sO1}, s{sJ}, 36', f's_add_u32 s{sO0}, s{sO0}, s{sO1}']
    for n_, r0 in enumerate(rt_rows):
        rt += [f's_add_u32 s{sO1}, s{sO0}, {r0*3456}',
               f'buffer_load_dwordx2 {vr(RT+2*n_,2)}, v{vRTs}, {sr(sA)}, s{sO1} offen',
               f'buffer_load_ushort v{RT+10+n_}, v{vRTg}, {sr(sB)}, s{sRT+1} offen offset:{r0*2}']
    P += seq('RT', rt)
    for k in range(2, 9): P += nextp(k)
    for k in range(2, XD): P += dma_group(k) + x_group(k)
    P += [
          f's_lshl_b32 s{sO0}, s{sW}, 11', f's_add_u32 s{sCQ}, s{sCQ}, s{sO0}',
          f's_mul_i32 s{sC}, s{sW}, {16*9216}', f's_lshr_b32 s{sO0}, s{sJ}, 1', f's_lshl_b32 s{sO1}, s{sO0}, 6', f's_add_u32 s{sC}, s{sC}, s{sO1}',
          f's_add_u32 s{sC}, s{sC}, 8192',
          f's_add_u32 s{sO0}, s{sO0}, 128', f's_lshl_b32 s{sO0}, s{sO0}, 10']
    for t in range(4):
        P += [f's_mul_i32 s{sOo+t}, s{sH+t}, 18432', f's_mul_i32 s{sH+t}, s{sH+t}, {144*1024}']
        if t < 2: P += [f's_add_u32 s{sHC+t}, s{sH+t}, s{sO0}']
    P += [f's_lshl_b32 s{sO0}, s{sJ}, 12', f's_mul_i32 s{sO1}, s{sJ}, 36', f's_add_u32 s{sO1}, s{sO1}, {O_OFF}']
    for t in range(4):
        P += [f's_add_u32 s{sH+t}, s{sH+t}, s{sO0}', f's_add_u32 s{sOo+t}, s{sOo+t}, s{sO1}']
    P += [f's_lshl_b32 s{sG}, s{sI}, 2', f's_add_u32 s{sG}, s{sG}, s{sW}', f's_lshl_b32 s{sG}, s{sG}, 8', f's_add_u32 s{sG}, s{sG}, {G_OFF}',
          f's_cmp_eq_u32 s{sJ}, 0', f's_cselect_b32 s{sG}, s{sG}, {HUGE}',
          f's_mov_b32 s{mG15}, 0x80008000', f's_mov_b32 s{mG15+1}, 0x80008000', f's_mov_b32 s{mPHI}, 0x0f0f0f0f', f's_mov_b32 s{mPHI+1}, 0x0f0f0f0f',
          f's_mov_b32 s{mONE}, 0x11111111', f's_mov_b32 s{mONE+1}, 0x11111111', f's_mov_b32 s{mQ0}, 0xffff', f's_mov_b32 s{mQ0+1}, 0',
          f'v_lshrrev_b32 v13, 5, v{vL}', 'v_lshlrev_b32 v13, 12, v13', f'v_and_b32 v14, 3, v{vL}', 'v_lshl_add_u32 v13, v14, 3, v13',
          f'v_bfe_u32 v14, v{vL}, 2, 3', 'v_lshl_add_u32 v15, v14, 7, v13', 'v_lshrrev_b32 v14, 1, v14', f'v_lshl_add_u32 v{vAF}, v14, 5, v15',
          f'v_xor_b32 v{vAF+1}, 32, v{vAF}', f'v_xor_b32 v{vAF+2}, 64, v{vAF}', f'v_xor_b32 v{vAF+3}, 0x60, v{vAF}',
          f'v_bfe_u32 v14, v{vL}, 4, 1', 'v_mul_u32_u24 v14, 544, v14', f'v_bfe_u32 v15, v{vL}, 2, 2', 'v_lshl_add_u32 v14, v15, 6, v14',
          f'v_add_u32 v{vAC}, v13, v14', f'v_xor_b32 v{vAC+1}, 32, v{vAC}',
          f'v_lshrrev_b32 v13, 2, v{vL}', 'v_mul_u32_u24 v13, 9216, v13', f'v_and_b32 v14, 0x30, v{vL16}', f'v_lshrrev_b32 v15, 5, v{vL}',
          'v_lshlrev_b32 v15, 5, v15', 'v_xor_b32 v14, v14, v15', f'v_add_u32 v{vC}, v13, v14',
          f's_lshl_b32 s{sO0}, s{sJ}, 2', f'v_mov_b32 v13, s{sO0}', f'v_mov_b32 v14, {HUGE}', f'v_cmp_eq_u32 vcc, 0, v{vL}',
          f'v_cndmask_b32 v{vDB}, v14, v13, vcc']
    P += pro_tail
    P += st.take('first')
    P = mk(P)
    body = P + S.linear()
    E = st.take('end') + st.dump(pWS, sW, 0, 12) + ['L_k1_end:', 's_endpgm']
    res = finalize(body + mk(E), 'k1')
    n0 = len(P)
    main = [x for x in res]
    idx = next(k for k, x in enumerate(res) if x.kind == 'mfma')
    check_owner(res, TEMPS, idx)
    ex, hist, worst = gap_report(res)
    print('[k1] est. exposed filler cycles', ex, hist, worst[:20])
    return kernel_text(name, text(res) + text(mk(slow)), 512, 256), st.names


def gen_k2(name, opt):
    diag = opt.get('diag', False)
    st = Stamps(diag, 84, 9)
    sWS, sWP, sOUT = 4, 8, 12
    pOUT, pWS = 16, 20
    sW, sKQ, sR, sCc, sPAR, sTK = 24, 25, 26, 27, 28, 29
    sHt, sOt, sOt4 = 30, 32, 34
    sWB, sD0, sD1, sSO, sM0 = 36, 37, 38, 39, 40
    sT0, sT1, sT2 = 41, 42, 43
    sXS, sXR, sOs = 44, 47, 48
    mPAR = 54
    sWO, sGo = 56, 58
    TEMPS = {'m0', 'scc', f's{sSO}'}
    vL16, vO, vLB, vG, vS, vL4, vOUT = 0, 1, 2, 6, 8, 12, 13
    WF = 16; NWS = 4
    ACC = 48
    HD = opt.get('hd', 5)
    HF = 120
    XR = HF
    def acc(t, f): return ACC + (t * 9 + f) * 4
    S = Sched()
    NPAIR = 21
    units = []; pair_pos = []
    def hreg(P_, t, kk): return vr(HF + 16 * (P_ % HD) + 8 * t + 4 * kk, 4)
    for P_ in range(NPAIR):
        pair_pos.append(S.n)
        for f in range(9):
            u = len(units); wb = WF + 8 * (u % NWS); p0 = S.n
            for t in range(2):
                kks = ((0, 1) if t == 0 else (1, 0)) if P_ < 20 else (0,)
                for n_, kk in enumerate(kks):
                    a = vr(acc(t, f), 4)
                    c = '0' if (P_ == 0 and n_ == 0) else a
                    S.mfma(f'{MFMA} {a}, {vr(wb+4*kk,4)}, {hreg(P_, t, kk)}, {c}')
            units.append((P_, f, p0, S.n - 1))
    pair_pos.append(S.n)
    NP = S.n
    def pp(P_, frac=0.0):
        a, b = pair_pos[P_], pair_pos[P_ + 1]
        return a + int((b - a) * frac) - 1
    def unit_reads(u):
        P_, f, p0, p1 = units[u]
        stg = P_ // 2; wb = WF + 8 * (u % NWS)
        return [I(f'ds_read_b128 {vr(wb+4*kk,4)}, v{vLB + stg % 4} offset:{((P_%2)*2+kk)*9216 + f*1024}', f'U{u}') for kk in ((0, 1) if P_ < 20 else (0,))]
    LA = NWS - 1
    pro_tail = []
    barp = {}
    for u in range(len(units)):
        P_, f = units[u][:2]
        pre = []
        if P_ % 2 == 0 and f == 0: pre = [need(f'W{P_//2}'), 's_barrier']
        if u < LA:
            pro_tail += pre + unit_reads(u); barp[0] = -1
        else:
            _, _, p0, p1 = units[u - LA]
            if pre:
                S.at(p0 - 1, pre); barp[P_ // 2] = p0 - 1
            S.place(unit_reads(u), p0, p1)
        if u > 0: S.tail_at(units[u][2] - 1, need(f'U{u}'))
    def dma_group(stg):
        tag = f'W{stg}'
        o = []
        if stg <= 9:
            if stg == 9: o += [f's_mov_b32 s{sWB}, s{sWO}']
            for n_ in range(9):
                g = []
                if n_ % 4 == 0: g.append(f's_add_u32 m0, s{sM0}, {(stg % 4)*36864 + (n_//4)*4096}')
                g.append(f's_mov_b32 s{sSO}, s{sWB}' if n_ == 0 else f's_add_u32 s{sSO}, s{sSO}, s{sD1 if n_ % 4 == 0 else sD0}')
                g.append(I(f'buffer_load_dwordx4 v{vL16}, {sr(sWP)}, s{sSO} offen offset:{(n_%4)*1024} lds', tag))
                o.append(g)
            if stg < 8: o.append(f's_add_u32 s{sWB}, s{sWB}, {4*36*1024}')
        else:
            for n_ in range(3):
                g = []
                if n_ == 0: g += [f's_mul_i32 s{sSO}, s{sW}, 3072', f's_add_u32 m0, s{sSO}, {(stg % 4)*36864}', f's_mov_b32 s{sSO}, s{sWO+1}']
                else: g.append(f's_add_u32 s{sSO}, s{sSO}, s{sD0}')
                g.append(I(f'buffer_load_dwordx4 v{vL16}, {sr(sWP)}, s{sSO} offen offset:{n_*1024} lds', tag))
                o.append(g)
        return seq(tag, o)
    def h_group(P_):
        o = []
        for t in range(2):
            for kk in ((0, 1) if P_ < 20 else (0,)):
                n_ = 2 * P_ + kk
                if P_ < 18:
                    o.append(f'buffer_load_dwordx4 {hreg(P_, t, kk)}, v{vL16}, {sr(sWS)}, s{sHt+t} offen offset:{(n_%4)*1024}')
                else:
                    so = sOt + t if n_ < 40 else sOt4 + t
                    o.append(f'buffer_load_dwordx4 {hreg(P_, t, kk)}, v{vO}, {sr(sWS)}, s{so} offen offset:{(n_-36)*64}')
        if P_ < 17 and P_ % 2 == 1:
            o += [f's_add_u32 s{sHt}, s{sHt}, 4096', f's_add_u32 s{sHt+1}, s{sHt+1}, 4096']
        return o
    for stg in range(2, 11):
        lo = max(barp[stg - 2] + 1, pp(2 * (stg - 2), 0.0) + 1)
        S.place(dma_group(stg), lo, pp(2 * (stg - 2) + 1, 0.8))
    for P_ in range(HD - 1, NPAIR):
        q = P_ - (HD - 1)
        S.place(h_group(P_), pp(q, 0.0) + 1, pp(q, 0.95))
    cur = -1
    for f in range(9):
        for t in range(2):
            u = 17 * 9 + f
            dn = units[u][2] + 2 * t + 1
            nx = units[u + 9][2] + 2 * t
            lo = max(cur, dn + 4)
            cur = S.place([f'v_mul_f32 v{acc(t,f)+r}, v{acc(t,f)+r}, v{vG+t}' for r in range(4)], lo, min(lo + 3, nx - 3))
            assert cur < nx - 1
    if diag:
        for nm, g in (('p4', pp(4, 0)), ('p10', pp(10, 0)), ('p18', pp(18, 0)), ('mend', NP - 1)):
            S.at(g, st.take(nm))
    P = ['s_cmp_ge_u32 s2, 256', 's_cbranch_scc1 L_k2_end'] + st.take('start')
    P += ['s_load_dwordx4 s[16:19], s[0:1], 64', 's_load_dwordx2 s[20:21], s[0:1], 80',
          'v_lshrrev_b32 v1, 6, v0', f'v_and_b32 v{vS}, 63, v0', f'v_readfirstlane_b32 s{sW}, v1',
          f's_and_b32 s{sKQ}, s2, 3', f's_bfe_u32 s{sR}, s2, 0x10002', f's_lshl_b32 s{sR}, s{sR}, 3', f's_bfe_u32 s{sT0}, s2, 0x30003',
          f's_add_u32 s{sR}, s{sR}, s{sT0}', f's_lshr_b32 s{sCc}, s2, 6', f's_and_b32 s{sPAR}, s{sKQ}, 1', f's_lshr_b32 s{sTK}, s{sKQ}, 1',
          f'v_lshlrev_b32 v{vL16}, 4, v{vS}',
          f's_mul_i32 s{sM0}, s{sW}, 9216',
          f's_mul_i32 s{sWB}, s{sKQ}, 36', f's_add_u32 s{sWB}, s{sWB}, s{sW}', f's_mul_i32 s{sWB}, s{sWB}, 36',
          f's_mul_i32 s{sT1}, s{sCc}, 9', f's_lshl_b32 s{sT0}, s{sPAR}, 3', f's_add_u32 s{sT1}, s{sT1}, s{sT0}',
          f's_add_u32 s{sWB}, s{sWB}, s{sT1}', f's_lshl_b32 s{sWB}, s{sWB}, 10',
          f's_mul_i32 s{sD0}, s{sPAR}, {u32(-2048)}', f's_add_u32 s{sD1}, s{sD0}, 4096',
          f's_lshl_b32 s{sT0}, s{sR}, 2', f's_add_u32 s{sT0}, s{sT0}, s{sW}', f's_lshl_b32 s{sT0}, s{sT0}, 1',
          f's_add_u32 s{sOt}, s{sT0}, s{sTK}', f's_xor_b32 s{sOt+1}, s{sOt}, 1',
          f's_mul_i32 s{sT2}, s{sKQ}, {36*1024}']
    for t in range(2):
        P += [f's_mul_i32 s{sHt+t}, s{sOt+t}, {144*1024}', f's_add_u32 s{sHt+t}, s{sHt+t}, s{sT2}']
    P += ['s_waitcnt lgkmcnt(0)',
          f's_add_u32 s{sWP}, s{pWS}, {WP_OFF}', f's_addc_u32 s{sWP+1}, s{pWS+1}, 0', f's_mov_b32 s{sWP+2}, {WP_BYTES}', f's_mov_b32 s{sWP+3}, 0x00020000']
    P += srd(sWS, pWS, WS_BYTES)
    P += dma_group(0) + h_group(0) + h_group(1) + dma_group(1)
    for k in range(2, HD - 1): P += h_group(k)
    P += srd(sOUT, pOUT, 2048 * 1152)
    P += [f's_mul_i32 s{sT0}, s{sKQ}, 5', f's_cmp_eq_u32 s{sKQ}, 3', f's_cselect_b32 s{sT2}, 1, 0', f's_sub_u32 s{sT0}, s{sT0}, s{sT2}',
          f's_add_u32 s{sT2}, s{sT0}, 144', f's_add_u32 s{sWO}, s{sT2}, s{sW}', f's_mul_i32 s{sWO}, s{sWO}, 36', f's_add_u32 s{sWO}, s{sWO}, s{sT1}',
          f's_lshl_b32 s{sWO}, s{sWO}, 10',
          f's_add_u32 s{sWO+1}, s{sT2}, 4', f's_mul_i32 s{sWO+1}, s{sWO+1}, 36', f's_add_u32 s{sWO+1}, s{sWO+1}, s{sT1}', f's_lshl_b32 s{sWO+1}, s{sWO+1}, 10',
          f's_add_u32 s{sT2}, s{sD0}, 1024', f's_mul_i32 s{sT2}, s{sT2}, s{sW}', f's_mul_i32 s{sT2}, s{sT2}, 3', f's_add_u32 s{sWO+1}, s{sWO+1}, s{sT2}',
          f's_lshl_b32 s{sT0}, s{sT0}, 6', f's_add_u32 s{sT0}, s{sT0}, {O_OFF}']
    for t in range(2):
        P += [f's_lshl_b32 s{sGo+t}, s{sOt+t}, 6', f's_add_u32 s{sGo+t}, s{sGo+t}, {G_OFF}']
    P += [f's_mul_i32 s{sOs}, s{sOt}, 18432']
    for t in range(2):
        P += [f's_mul_i32 s{sOt+t}, s{sOt+t}, 18432', f's_add_u32 s{sOt+t}, s{sOt+t}, s{sT0}',
              f's_cmp_ge_u32 s{sKQ}, 2', f's_cselect_b32 s{sOt4+t}, {HUGE}, s{sOt+t}']
    P += [f'v_and_b32 v{vS+1}, 15, v{vS}', f'v_lshrrev_b32 v{vS+2}, 4, v{vS}', f'v_mul_u32_u24 v{vS+3}, 1152, v{vS+1}',
          f'v_lshl_add_u32 v{vO}, v{vS+2}, 4, v{vS+3}', f'v_lshl_add_u32 v{vOUT}, v{vS+2}, 3, v{vS+3}', f'v_lshlrev_b32 v{vL4}, 2, v{vS}',
          f'v_lshlrev_b32 v{vS+1}, 2, v{vS+1}']
    for t in range(2):
        P += [f'buffer_load_dword v{vG+t}, v{vS+1}, {sr(sWS)}, s{sGo+t} offen']
    for k in range(4):
        P += [f'v_add_u32 v{vLB+k}, {k*36864}, v{vL16}']
    P += [f's_lshl_b32 s{sT0}, s{sR}, 2', f's_add_u32 s{sT0}, s{sT0}, s{sCc}', f's_lshl_b32 s{sT0}, s{sT0}, 2']
    for d in range(1, 4):
        P += [f's_xor_b32 s{sT2}, s{sKQ}, {d}', f's_add_u32 s{sT2}, s{sT2}, s{sT0}', f's_mul_i32 s{sT2}, s{sT2}, 12', f's_add_u32 s{sT2}, s{sT2}, s{sW}',
              f's_add_u32 s{sT2}, s{sT2}, {4*(d-1)}', f's_mul_i32 s{sXS+d-1}, s{sT2}, 2304', f's_add_u32 s{sXS+d-1}, s{sXS+d-1}, {X_OFF}']
    P += [f's_add_u32 s{sT2}, s{sKQ}, s{sT0}', f's_mul_i32 s{sT2}, s{sT2}, 12', f's_add_u32 s{sT2}, s{sT2}, s{sW}',
          f's_mul_i32 s{sXR}, s{sT2}, 2304', f's_add_u32 s{sXR}, s{sXR}, {X_OFF}',
          f's_mul_i32 s{sT2}, s{sCc}, 288', f's_add_u32 s{sOs}, s{sOs}, s{sT2}',
          f's_lshl_b32 s{sT2}, s{sPAR}, 2', f's_add_u32 s{sOs+4}, s{sOs}, s{sT2}', f's_add_u32 s{sOs+4}, s{sOs+4}, 128',
          f's_lshl_b32 s{sT2}, s{sPAR}, 8', f's_add_u32 s{sOs}, s{sOs}, s{sT2}',
          f's_mul_i32 s{sT2}, s{sPAR}, {u32(-64)}', f's_add_u32 s{sT2}, s{sT2}, 32']
    for k in range(1, 4): P += [f's_add_u32 s{sOs+k}, s{sOs+k-1}, s{sT2}']
    P += [f's_sub_u32 s{mPAR}, 0, s{sPAR}', f's_sub_u32 s{mPAR+1}, 0, s{sPAR}']
    P += pro_tail + st.take('first')
    T = []
    SB = WF
    m = sr(mPAR, 2)
    HK = vS
    a0, a1 = acc(0, 4), acc(1, 4)
    def pack(dst, a): return [f'v_cvt_pk_bf16_f32 v{dst}, v{a}, v{a+1}', f'v_cvt_pk_bf16_f32 v{dst+1}, v{a+2}, v{a+3}']
    send = {1: [(0, 8), (0, 7), (0, 6), (0, 5)], 2: [(1, 0), (1, 1), (1, 2), (1, 3)], 3: [(1, 8), (1, 7), (1, 6), (1, 5)]}
    for d in (2, 3, 1):
        b = SB + 10 * (d - 1)
        for k, (t, f) in enumerate(send[d]):
            T += pack(b + 2 * k, acc(t, f))
            if k % 2 == 1:
                T += [f'buffer_store_dwordx4 {vr(b+2*k-2,4)}, v{vL16}, {sr(sWS)}, s{sXS+d-1} offen offset:{(k//2)*1024} sc1']
    T += pack(SB + 30, a1)
    T += [f'v_cndmask_b32 v{SB+18}, v{SB+30}, v{SB+31}, {m}', f'v_cndmask_b32 v{SB+28}, v{SB+31}, v{SB+30}, {m}']
    T += pack(SB + 30, a0)
    T += [f'v_cndmask_b32 v{SB+8}, v{SB+31}, v{SB+30}, {m}']
    for d in (2, 3, 1):
        T += [f'buffer_store_dword v{SB+10*(d-1)+8}, v{vL4}, {sr(sWS)}, s{sXS+d-1} offen offset:2048 sc1']
    T += [f'v_cndmask_b32 v{HK}, v{a0}, v{a0+2}, {m}', f'v_cndmask_b32 v{HK+1}, v{a0+1}, v{a0+3}, {m}']
    T += st.take('sent')
    T += [f's_mov_b32 s{sT0}, 5000', 'L_k2_recv:', f's_mov_b32 s{sT1}, s{sXR}']
    for d in range(3):
        b = XR + 12 * d
        if d: T += [f's_add_u32 s{sT1}, s{sT1}, {4*2304}']
        T += [f'buffer_load_dwordx4 {vr(b,4)}, v{vL16}, {sr(sWS)}, s{sT1} offen sc1',
              f'buffer_load_dwordx4 {vr(b+4,4)}, v{vL16}, {sr(sWS)}, s{sT1} offen offset:1024 sc1',
              f'buffer_load_dword v{b+8}, v{vL4}, {sr(sWS)}, s{sT1} offen offset:2048 sc1']
    mx = vS + 2
    first = True
    for d in range(3):
        b = XR + 12 * d
        for k in range(0, 9, 2):
            x, y = b + k, b + min(k + 1, 8)
            T += [f'v_max_u32 v{mx}, v{x}, v{y}' if first else f'v_max3_u32 v{mx}, v{x}, v{y}, v{mx}']
            first = False
    T += [f'v_cmp_eq_u32 vcc, -1, v{mx}', f's_sub_u32 s{sT0}, s{sT0}, 1', f's_cmp_eq_u32 s{sT0}, 0', 's_cbranch_scc1 L_k2_got',
          's_nop 2', 's_cbranch_vccnz L_k2_recv', 'L_k2_got:']
    T += st.take('got')
    keep = [acc(0, k) for k in range(4)]
    for k in range(9):
        lo_, hi_ = (keep[k // 2] + 2 * (k % 2), keep[k // 2] + 2 * (k % 2) + 1) if k < 8 else (HK, HK + 1)
        for d in range(3):
            x = XR + 12 * d + k
            T += [f'v_lshlrev_b32 v{vS+2}, 16, v{x}', f'v_and_b32 v{x}, 0xffff0000, v{x}', f'v_add_f32 v{lo_}, v{lo_}, v{vS+2}', f'v_add_f32 v{hi_}, v{hi_}, v{x}']
        if k < 8 and k % 2 == 1:
            a = keep[k // 2]
            T += pack(a, a) + [f'buffer_store_dwordx2 {vr(a,2)}, v{vOUT}, {sr(sOUT)}, s{sOs + k//2} offen']
    T += [f'v_cvt_pk_bf16_f32 v{HK}, v{HK}, v{HK+1}', f'buffer_store_dword v{HK}, v{vOUT}, {sr(sOUT)}, s{sOs+4} offen']
    E = st.take('end') + st.dump(pWS, sW, 1 << 18, 8) + ['L_k2_end:', 's_endpgm']
    P = mk(P)
    res = finalize(P + S.linear() + mk(T) + mk(E), 'k2')
    idx = next(k for k, x in enumerate(res) if x.kind == 'mfma')
    idx2 = max(k for k, x in enumerate(res) if x.kind == 'mfma')
    check_owner(res[:idx2], TEMPS, idx)
    ex, hist, worst = gap_report(res)
    print('[k2] est. exposed filler cycles', ex, hist, worst[:20])
    return kernel_text(name, text(res), HF + 16 * HD, ((HF + 16 * HD + 3) // 4) * 4), st.names


HEADER = open('gated_mix__linear_attn_block__glu_gated_bilinear__prompt.s.ref').read().split('; Override launch')[0]

def build(path, opt):
    k1, n1 = gen_k1('ffn_qkv_kernel', opt)
    k2, n2 = gen_k2('mix_out_kernel', opt)
    s = HEADER
    s += '; @launch kernel=ffn_qkv_kernel grid=(256,1,1) block=(256,1,1) lds=163840\n'
    s += '; @launch kernel=mix_out_kernel grid=(256,1,1) block=(256,1,1) lds=147456\n'
    s += '.amdgcn_target "amdgcn-amd-amdhsa--gfx950"\n' + k1 + k2
    open(path, 'w').write(s)
    return n1, n2

if __name__ == '__main__':
    out = sys.argv[1] if len(sys.argv) > 1 else 'k.s'
    opt = eval(sys.argv[2]) if len(sys.argv) > 2 else {}
    print(build(out, opt))
```

```python
import sys
from asmlib import *

H_OFF = 0
HROW = 162 * 1024
WP_OFF = 0x1500000
WP_BYTES = 162 * 36 * 1024
G_OFF = 0x1B00000
KV_OFF = 0x1C00000
CQ_OFF = 0x1D00000
FL_OFF = 0x1B80000
X_OFF = 0x2000000
WS_BYTES = 0x2800000
HUGE = 0x40000000
STAMP_OFF = 200 << 20

LOG2E = 0x3fb8aa3b
NLOG2E = 0xbfb8aa3b
EPS6 = 0x358637bd
MFMA = 'v_mfma_f32_16x16x32_bf16'

def srd(d, base, nbytes):
    return [f's_mov_b32 s{d}, s{base}', f's_mov_b32 s{d+1}, s{base+1}', f's_mov_b32 s{d+2}, {nbytes}', f's_mov_b32 s{d+3}, 0x00020000']

def vr(a, n): return f'v[{a}:{a+n-1}]'
def sr(a, n=4): return f's[{a}:{a+n-1}]'
def u32(x): return x & 0xffffffff

class Stamps:
    def __init__(self, on, base, vreg):
        self.on, self.base, self.vreg, self.names = on, base, vreg, []
    def take(self, name):
        if not self.on: return []
        i = I('s_nop 0'); i.tag = ('STAMP', name)
        return [i]
    def expand(self, res):
        if not self.on: return res
        out = []
        for x in res:
            if isinstance(x.tag, tuple) and x.tag[0] == 'STAMP':
                k = len(self.names); self.names.append(x.tag[1])
                cur, prv = self.base + 2 * (k % 2), self.base + 2 * ((k + 1) % 2)
                if k >= 1 and x.tag[1] != 'first0':
                    out += self.save(k - 1)
                i = I(f's_memrealtime s[{cur}:{cur+1}]'); i.kind = 'salu'; i.wr = []
                out.append(i)
            else: out.append(x)
        return out
    def save(self, k):
        r = self.base + 2 * (k % 2); t = self.base + 4
        o = mk([f's_bfe_u32 s{t}, s{r}, 0x1e0000', f's_bitset1_b32 s{t}, 30', f'v_writelane_b32 v{self.vreg}, s{t}, {k + 1}'])
        for i in o: i.wr = [w for w in i.wr if w != 'scc']; i.rd = []
        return o
    def dump(self, ws, wave, koff, vt):
        if not self.on: return []
        return [I('s_waitcnt vmcnt(0) lgkmcnt(0)'), self.take('dummy')[0],
                f's_add_u32 s4, s{ws}, {STAMP_OFF + koff}', f's_addc_u32 s5, s{ws+1}, 0', f's_mov_b32 s6, {1<<20}', 's_mov_b32 s7, 0x00020000',
                's_lshl_b32 s3, s2, 2', f's_add_u32 s3, s3, s{wave}', 's_lshl_b32 s3, s3, 8',
                f'v_mbcnt_lo_u32_b32 v{vt}, -1, 0', f'v_mbcnt_hi_u32_b32 v{vt}, -1, v{vt}', f'v_lshlrev_b32 v{vt}, 2, v{vt}',
                f'buffer_store_dword v{self.vreg}, v{vt}, s[4:7], s3 offen']

def kernel_text(name, body, vgpr, accum, sgpr=102):
    return f'''.text
.globl {name}
.p2align 8
.type {name},@function
{name}:
{body}.section .rodata,"a"
.p2align 6
.amdhsa_kernel {name}
  .amdhsa_next_free_vgpr {vgpr}
  .amdhsa_next_free_sgpr {sgpr}
  .amdhsa_accum_offset {accum}
  .amdhsa_group_segment_fixed_size 0
  .amdhsa_kernarg_size 88
  .amdhsa_user_sgpr_count 2
  .amdhsa_user_sgpr_kernarg_segment_ptr 1
  .amdhsa_system_sgpr_workgroup_id_x 1
.end_amdhsa_kernel
'''

def gen_k1(name, opt):
    diag = opt.get('diag', False)
    st = Stamps(diag, 92, 0)
    sX, sWG, sWU, sWS, sDBG, sA, sB = 4, 8, 12, 16, 20, 24, 28
    pX, pQKV, pWO, pWG, pWU, pWD, pGW, pDBG, pWS = 32, 34, 36, 40, 42, 44, 46, 48, 50
    sW, sJ, sI, sPAR2 = 52, 53, 54, 55
    sP = 56
    sW4K, sAB, sCQ, sC, sO0, sO1 = 65, 66, 67, 68, 69, 70
    sH, sHC = 71, 75
    sPT = 77
    sOo = 32
    sG, sPL, sXo = 38, 39, 3
    sT0F, sHB = 86, 87
    mG15, mPHI, mONE, mQ0 = 40, 42, 46, 48
    sRT = 77
    sXT, sXB, sXo2 = 86, 81, 82
    sNON, sFL = 84, 85
    TEMPS = {'m0', 'scc', 'vcc', f's{sO0}', f's{sO1}', f's{sXo}', f's{sPL}', 'v12', 'v13', 'v14', 'v15', 'v1'} | {f's{k}' for k in range(77, 84)}
    vDB, vPOLL = 0, 1
    vAF = 2; vAB = 6; vCQ = 7; vC = 8; vAC = 9; vL16 = 11; vS = 12
    WF = 16; ACC = 40; TMP = 168; XV = 200; PQ = 232; SP = 248
    def acc(f, t): return ACC + (f * 4 + t) * 4
    def xreg(ks, t):
        n = ks * 4 + t
        return f'a[{4*n}:{4*n+3}]' if n < 64 else vr(XV + 4 * (n - 64), 4)
    LDS_SCR = 131072
    LDS_KV = LDS_SCR
    def slot(stg): return stg if stg < 6 else (stg - 6) % 8

    S = Sched()
    units = []
    stage_pos = []
    for stg in range(36):
        ch, sg = divmod(stg, 9)
        order = {0: range(8), 1: range(4), 2: [4, 5, 6, 7, 0, 1, 2, 3], 3: [4, 5, 6, 7]}[ch]
        nt = 2 if ch == 3 else 4
        stage_pos.append(S.n)
        for f in order:
            u = len(units); wb = WF + 8 * (u % 3)
            p0 = S.n
            for t in range(nt):
                kks = (0, 1) if t % 2 == 0 else (1, 0)
                for n_, kk in enumerate(kks):
                    a = vr(acc(f, t), 4)
                    c = '0' if (sg == 0 and n_ == 0) else a
                    wv = vr(wb + 4 * kk, 4); xv = xreg(2 * sg + kk, t)
                    swap = (ch == 1 and f != 2)
                    S.mfma(f'{MFMA} {a}, {xv if swap else wv}, {wv if swap else xv}, {c}')
            units.append((stg, ch, f, p0, S.n - 1))
    stage_pos.append(S.n)
    NP = S.n
    def sp(stg, frac=0.0):
        a, b = stage_pos[stg], stage_pos[stg + 1]
        return a + int((b - a) * frac) - 1
    def done_pos(stg, f, t):
        for (s_, ch, f_, p0, p1) in units:
            if s_ == stg and f_ == f: return p0 + 2 * t + 1
        raise KeyError
    def first_pos(stg, f, t): return done_pos(stg, f, t) - 1
    def bar_pos(stg):
        u0 = next(k for k, u in enumerate(units) if u[0] == stg)
        return units[u0 - 2][3] - 1 if u0 >= 2 else -1

    def unit_reads(u):
        stg, ch, f, p0, p1 = units[u]
        wb = WF + 8 * (u % 3)
        base = (slot(stg) % 4) * 16384
        out = []
        for kk in (0, 1):
            for h in (0, 1):
                if ch == 3:
                    ff = f - 4
                    a, off = vAC + (ff >> 1), base + kk * 8192 + h * 256 + (ff & 1) * 2048
                elif ch == 1:
                    a, off = vAF + f, base + kk * 8192 + h * 1024
                else:
                    a, off = vAF + (f >> 1), base + kk * 8192 + h * 1024 + (f & 1) * 2048
                out.append(I(f'ds_read_b64_tr_b16 {vr(wb+4*kk+2*h, 2)}, v{a} offset:{off}', f'U{u}'))
        return out
    pro_tail = []
    extra_need = {}
    extra_need[opt.get('kvbar', 22)] = ['KVW']
    extra_need[opt.get('kvbar2', 30)] = ['KVW2']
    for u in range(len(units)):
        stg = units[u][0]
        pre = []
        if u == 0 or units[u - 1][0] != stg:
            pre = [[need(f'W{stg}', *extra_need.get(stg, [])), 's_barrier']]
            if stg > 0 and stg != 27 and slot(stg) // 4 != slot(stg - 1) // 4:
                regs = [vAF + k for k in range(4)] if stg < 27 else [vAC, vAC + 1]
                pre += [[f'v_xor_b32 v{r}, 0x10000, v{r}'] for r in regs]
        if u < 2:
            pro_tail += pre + unit_reads(u)
        else:
            _, _, _, p0, p1 = units[u - 2]
            if pre: S.at(p0 - 1, pre[0])
            S.place(pre[1:] + unit_reads(u), p0, p1 - 1)
        if u > 0: S.tail_at(units[u][3] - 1, need(f'U{u}'))

    def dma_group(stg):
        ch, sg = divmod(stg, 9)
        tag = f'W{stg}'
        m0 = f's_add_u32 m0, s{sW4K}, {slot(stg) * 16384}'
        if ch in (0, 2):
            o = [m0, f's_mul_i32 s{sO0}, s{sP+sg}, 589824', f's_add_u32 s{sO0}, s{sO0}, s{sAB}',
                 I(f'buffer_load_dwordx4 v{vAB}, {sr(sWG)}, s{sO0} offen lds', tag),
                 f's_add_u32 s{sO1}, s{sO0}, {36864-1024}',
                 I(f'buffer_load_dwordx4 v{vAB}, {sr(sWU)}, s{sO0} offen offset:2048 lds', tag),
                 I(f'buffer_load_dwordx4 v{vAB}, {sr(sWG)}, s{sO1} offen offset:1024 lds', tag),
                 I(f'buffer_load_dwordx4 v{vAB}, {sr(sWU)}, s{sO1} offen offset:3072 lds', tag)]
            if stg == 8: o.append(f's_add_u32 s{sAB}, s{sAB}, 128')
        elif ch == 1:
            o = [m0, f's_lshl_b32 s{sO0}, s{sP+sg}, 13', f's_add_u32 s{sO0}, s{sO0}, s{sCQ}',
                 I(f'buffer_load_dwordx4 v{vCQ}, {sr(sWS)}, s{sO0} offen sc1 lds', tag),
                 f's_sub_u32 s{sO1}, s{sO0}, 512',
                 I(f'buffer_load_dwordx4 v{vCQ}, {sr(sWS)}, s{sO1} offen offset:1024 sc1 lds', tag)]
        else:
            o = [m0, f's_mul_i32 s{sO0}, s{sP+sg}, 589824', f's_add_u32 s{sO0}, s{sO0}, s{sC}',
                 I(f'buffer_load_dwordx4 v{vC}, {sr(sWG)}, s{sO0} offen lds', tag),
                 I(f'buffer_load_dwordx4 v{vC}, {sr(sWU)}, s{sO0} offen offset:2048 lds', tag)]
        return seq(tag, o)
    vXV, vXA = PQ, PQ + 2
    def x_group(sg):
        o = [f's_lshl_b32 s{sXo}, s{sP+sg}, 7']
        for t in range(4):
            g = []
            if t % 2 == 0: o.append(f's_add_u32 m0, s{sXB}, {(32768 if sg % 2 == 0 else 0) + (t // 2) * 4096}')
            o.append(f's_add_u32 s{sXo2}, s{sXo}, s{sXT+t}')
            if sg >= 2 and t == 0: o.append(need(f'XR{sg-2}'))
            for n_ in (0, 1):
                o.append(I(f'buffer_load_dwordx4 v{vXV+n_}, {sr(sX)}, s{sXo2} offen offset:{(t%2)*2048 + n_*1024} lds', f'X{sg}t{t}'))
        return seq(f'X{sg}', o)
    def x_reads(sg):
        o = []
        for t in range(4):
            for kk in (0, 1):
                r = I(f'ds_read_b128 {xreg(2*sg+kk, t)}, v{vXA+kk} offset:{(32768 if sg % 2 == 0 else 0) + t*2048}', f'XR{sg}')
                o.append([need(f'X{sg}t{t}'), r] if kk == 0 else [r])
        return o
    xs = opt.get('xsched', {1: (0, 0, .4), 2: (0, .45, .95), 3: (1, .1, .95), 4: (2, .1, .95), 5: (3, .1, .95), 6: (4, .1, .95), 7: (5, .1, .95), 8: (6, .1, .95)})
    xr = opt.get('xread', (.6, .97))
    for sg in range(1, 9):
        s0, fa, fb = xs[sg]
        S.place(dma_group(sg) + x_group(sg), sp(s0, fa) + 1, sp(s0, fb))
        S.place(x_reads(sg), sp(sg - 1, xr[0] if sg > 1 else .8), sp(sg - 1, xr[1]))

    RT = TMP
    vRTs, vRTd, vRTg = TMP + 16, TMP + 17, TMP + 18
    rt_rows = [0, 4, 8, 12, 14]
    rt_proc = []
    for n_, r0 in enumerate(rt_rows):
        d = RT + 2 * n_; g_ = RT + 10 + n_
        rt_proc += [f'v_cndmask_b32 v{d}, v{d}, v{g_}, {sr(mG15,2)}', f'v_cndmask_b32 v{d+1}, v{d+1}, 0, {sr(mG15,2)}',
                    I(f'buffer_store_dwordx2 {vr(d,2)}, v{vRTd}, {sr(sWS)}, s{sRT} offen offset:{r0*128} sc1', 'CQ')]
    rt = [f's_mul_i32 s{sRT+2}, s{sI}, 72', f's_mul_i32 s{sRT+3}, s{sW}, 18', f's_add_u32 s{sRT+2}, s{sRT+2}, s{sRT+3}',
          f's_mul_i32 s{sRT}, s{sJ}, 576', f's_add_u32 s{sRT}, s{sRT}, s{sRT+2}', f's_lshl_b32 s{sRT}, s{sRT}, 7', f's_add_u32 s{sRT}, s{sRT}, {CQ_OFF}',
          f's_lshl_b32 s{sRT+1}, s{sRT+2}, 1',
          f's_mul_i32 s{sRT+2}, s{sRT+2}, 3456', f's_mul_i32 s{sRT+3}, s{sJ}, 36', f's_add_u32 s{sRT+2}, s{sRT+2}, s{sRT+3}',
          f'v_bfe_u32 v13, v{vL16}, 4, 4', f'v_lshrrev_b32 v14, 8, v{vL16}',
          f'v_lshlrev_b32 v{vRTg}, 1, v14', f'v_mul_u32_u24 v{vRTs}, 3456, v14', f'v_lshrrev_b32 v{vRTd}, 1, v{vL16}',
          'v_cmp_gt_u32 vcc, 12, v13', 'v_lshrrev_b32 v14, 2, v13', 'v_subrev_u32 v15, 12, v13', 'v_cndmask_b32 v14, v15, v14, vcc',
          'v_and_b32 v13, 3, v13', 'v_lshlrev_b32 v13, 3, v13', 'v_cndmask_b32 v13, 28, v13, vcc',
          'v_add_u32 v14, 1, v14', 'v_subrev_u32 v15, 3, v14', 'v_min_u32 v14, v14, v15', 'v_mul_u32_u24 v14, 1152, v14',
          f'v_add3_u32 v{vRTs}, v{vRTs}, v13, v14']
    rtl = []
    for n_, r0 in enumerate(rt_rows):
        rtl += [f's_add_u32 s{sRT+3}, s{sRT+2}, {r0*3456}',
                f'buffer_load_dwordx2 {vr(RT+2*n_,2)}, v{vRTs}, {sr(sA)}, s{sRT+3} offen',
                f'buffer_load_ushort v{RT+10+n_}, v{vRTg}, {sr(sB)}, s{sRT+1} offen offset:{r0*2}']
    RL = opt.get('rtload', (1, 0.0, 1, 0.9)); RP = opt.get('rtproc', (3, 0.0, 3, 0.5)); RG = opt.get('rtsig', (5, 0.3))
    S.place(seq('RT', rt), sp(0, 0.1), sp(0, 0.95))
    S.place(seq('RT', rtl), sp(RL[0], RL[1]) + 1, sp(RL[2], RL[3]))
    S.place(seq('RT', rt_proc), sp(RP[0], RP[1]) + 1, sp(RP[2], RP[3]))
    slow = []
    def signal(tag, kind):
        return seq('SIG' + tag, [f'v_mov_b32 v{vPOLL}, s{sNON}', [need(tag), f'buffer_store_dword v{vPOLL}, v{vDB}, {sr(sWS)}, s{sFL} offen offset:{kind*128} sc1']])
    def poll(lbl, kind, pos_load, pos_chk):
        nonlocal slow
        if kind is None:
            ld = [f'v_mov_b32 v{vPOLL}, 0', f'buffer_load_dword v{vPOLL}, v{vPOLL}, {sr(sDBG)}, 0 offen sc1']
            chk1 = [f'v_readfirstlane_b32 s{sNON}, v{vPOLL}']
            chk2 = [f's_cmp_lg_u32 s{sNON}, 0']; br_ok, br_bad = 's_cbranch_scc1', 's_cbranch_scc0'
        else:
            ld = [f'v_bfe_u32 v{vPOLL}, v{vL16}, 2, 7', f'buffer_load_dword v{vPOLL}, v{vPOLL}, {sr(sWS)}, s{sFL} offen offset:{kind*128} sc1']
            chk1 = [f'v_cmp_ne_u32 vcc, s{sNON}, v{vPOLL}']
            chk2 = []; br_ok, br_bad = 's_cbranch_vccz', 's_cbranch_vccnz'
        slow += [f'L_slow_{lbl}:', f's_mov_b32 s{sPL}, 20000', f'L_spin_{lbl}:', 's_sleep 2'] + ld + ['s_waitcnt vmcnt(0)'] + chk1 + [
                 's_nop 4', f's_sub_u32 s{sPL}, s{sPL}, 1', f's_cmp_eq_u32 s{sPL}, 0', f's_cbranch_scc1 L_ok_{lbl}'] + chk2 + [
                 f'{br_bad} L_spin_{lbl}', f's_branch L_ok_{lbl}']
        S.at(pos_load, seq('PL' + lbl, [ld[0]])); S.at(pos_load + 1, seq('PL' + lbl, [ld[1]]))
        S.at(pos_chk, seq('PL' + lbl, chk1))
        S.at(pos_chk + 2, seq('PL' + lbl, chk2 + [f'{br_bad} L_slow_{lbl}', f'L_ok_{lbl}:']))
    poll('non', None, sp(2, 0.5), sp(4, 0.5))
    S.place(signal('CQ', 0), sp(*RG), sp(*RG) + 2)
    PC = opt.get('cqpoll', (6, 0.7, 7, 0.3))
    poll('cq', 0, sp(PC[0], PC[1]), sp(PC[2], PC[3]))
    iss = {9: (7, .4, .65), 10: (7, .7, .95), 11: (8, .0, .25), 12: (8, .33, .58), 13: (8, .66, .92),
           14: (9, 0, .4), 15: (10, 0, .4), 16: (11, 0, .4), 17: (12, 0, .4), 18: (12, .55, .95)}
    for s_ in range(19, 36): iss[s_] = (s_ - 6, .05, .9)
    if opt.get('bslow', 1):
        iss.update({18: (13, .5, .95), 19: (15, .5, .95), 20: (17, .3, .8), 21: (18, .3, .8), 22: (19, .1, .6), 23: (20, .05, .45), 24: (20, .55, .95),
                    25: (21, .05, .45), 26: (22, .05, .45), 27: (22, .6, .9), 28: (23, .1, .5), 29: (23, .6, .9), 30: (24, .1, .9), 31: (25, .1, .9)})
    for s_, (s0, fa, fb) in sorted(iss.items()):
        lo = max(sp(s0, fa) + 1, bar_pos(8 if s_ in (12, 13) else (s_ - 4 if s_ < 12 else s_ - 6)) + 1)
        hi = max(lo, sp(s0, fb))
        assert hi < bar_pos(s_), s_
        S.place(dma_group(s_), lo, hi)

    def ffn_epi(stg, pairs, nts, soff, limit, dstf, flag='sc1'):
        items = []; stores = []
        for (fe, fo, imm) in pairs:
            for k_, f in enumerate((fe, fo)):
                for t in range(nts):
                    g_, u_ = acc(f, t), acc(f + 1, t)
                    dst = dstf(fe, t) + 2 * k_
                    sq = [f'v_mul_f32 v{g_+r}, v{g_+r}, v{u_+r}' for r in range(4)]
                    sq += [f'v_cvt_pk_bf16_f32 v{dst}, v{g_}, v{g_+1}', f'v_cvt_pk_bf16_f32 v{dst+1}, v{g_+2}, v{g_+3}']
                    st_ = f'buffer_store_dwordx4 {vr(dstf(fe,t),4)}, v{vL16}, {sr(sWS)}, s{soff+t} offen offset:{imm} {flag}' if k_ == 1 else None
                    items.append((done_pos(stg, f + 1, t) + 4, limit(fe), sq, st_))
        cur = -1
        for lo, hi, sq, st_ in items:
            lo = max(lo, cur)
            if lo >= NP - 1:
                S.at(NP - 1, sq); cur = NP - 1
            else:
                cur = S.place(sq, lo, max(lo, min(hi, lo + 4)))
                assert cur <= hi or hi >= NP - 1, (stg, cur, hi)
            if st_: stores.append((cur, st_))
        return stores
    def pace(stores, lo, hi):
        n = len(stores)
        for k, (e, st_) in enumerate(stores):
            g = min(NP - 1, max(e + (1 if e < NP - 1 else 0), lo + (k * (hi - lo)) // max(1, n - 1)))
            S.place([st_], g, min(NP - 1, g + 1))
    stA = ffn_epi(8, [(0, 2, 0), (4, 6, 1024)], 4, sH, lambda fe: (first_pos(9, 0, 0) - 2) if fe == 0 else sp(10, 0.5),
                  lambda fe, t: TMP + (fe // 4) * 16 + 4 * t)
    pace(stA, sp(8, 0.7), sp(16, 0.5))

    vPV = acc(6, 0)
    sU, sKB, sCG, sD0, sD1, sLB, sTY = [sPT + k for k in range(7)]
    pt = [f's_lshl_b32 s{sU}, s2, 2', f's_add_u32 s{sU}, s{sU}, s{sW}',
          f'v_lshrrev_b32 v{vS}, 7, v{vL16}',
          f'v_lshrrev_b32 v{vS+1}, 1, v{vS}', f'v_lshlrev_b32 v{vS+1}, 5, v{vS+1}',
          f'v_and_b32 v{vS+2}, 0x70, v{vL16}', f'v_xor_b32 v{vS+1}, v{vS+1}, v{vS+2}',
          f'v_mul_u32_u24 v{vPV}, 1152, v{vS}', f'v_add_u32 v{vPV}, v{vPV}, v{vS+1}',
          f'v_lshrrev_b32 v{vS+1}, 2, v{vS}', f'v_mul_u32_u24 v{vS+1}, 68, v{vS+1}', f'v_and_b32 v{vS}, 2, v{vS}',
          f'v_lshl_add_u32 v{vS+1}, v{vS}, 3, v{vS+1}', f'v_mul_u32_u24 v{vPV+2}, 1152, v{vS+1}',
          f's_lshr_b32 s{sLB}, s{sW}, 1', f's_lshl_b32 s{sLB}, s{sLB}, 13', f's_and_b32 s{sKB}, s{sW}, 1', f's_lshl_b32 s{sKB}, s{sKB}, 11',
          f's_add_u32 s{sLB}, s{sLB}, s{sKB}', f's_add_u32 s{sLB}, s{sLB}, {LDS_SCR}']
    def pt_idx(dst):
        return [f's_mul_hi_u32 s{sKB}, s{sU}, {(2**32 + 8)//9}', f's_mul_i32 s{sCG}, s{sKB}, 9', f's_sub_u32 s{sCG}, s{sU}, s{sCG}',
                f's_lshl_b32 s{dst}, s{sU}, 12', f's_add_u32 s{dst}, s{dst}, {WP_OFF}', f's_lshl_b32 s{sCG}, s{sCG}, 7']
    pt += pt_idx(sD0) + srd(sA, pWD, 4608 * 1152)
    pt += [f's_mul_i32 s{sKB}, s{sKB}, {32*1152}', f's_add_u32 s{sKB}, s{sKB}, s{sCG}']
    pt_dma0 = []
    for qh in (0, 1):
        pt_dma0.append([f's_add_u32 m0, s{sLB}, {qh*4096}', f's_add_u32 s{sCG}, s{sKB}, {8*qh*1152}',
                        I(f'buffer_load_dwordx4 v{vPV}, {sr(sA)}, s{sCG} offen lds', 'PT0'),
                        f's_add_u32 s{sCG}, s{sKB}, {(16+8*qh)*1152 - 1024}',
                        I(f'buffer_load_dwordx4 v{vPV}, {sr(sA)}, s{sCG} offen offset:1024 lds', 'PT0')])
    sHS, sQS = sO0, sO1
    pt1 = [f's_add_u32 s{sU}, s{sU}, 1024'] + pt_idx(sD1)
    pt1 += [f's_mov_b32 s{sB+2}, {4608*1152}', f's_mov_b32 s{sB+3}, 0x00020000',
            [f's_cmp_ge_u32 s{sU}, 1458', f's_cselect_b32 s{sD1}, {HUGE}, s{sD1}', f's_cselect_b32 s{sCG}, {HUGE}, s{sCG}'],
            f's_lshl_b32 s{sU}, s{sKB}, 5', f's_mul_i32 s{sTY}, s{sKB}, 36', f's_sub_u32 s{sTY}, s{sTY}, {144*36}',
            [f's_cmp_ge_u32 s{sKB}, 144', f's_cselect_b32 s{sB}, s{pWO}, s{pWD}', f's_cselect_b32 s{sB+1}, s{pWO+1}, s{pWD+1}',
             f's_cselect_b32 s{sB+2}, {576*1152}, s{sB+2}', f's_cselect_b32 s{sU}, s{sTY}, s{sU}'],
            f's_mul_i32 s{sTY}, s{sKB}, 288', f's_sub_u32 s{sTY}, s{sTY}, {160*288 - 16}',
            [f's_cmp_ge_u32 s{sKB}, 160', f's_cselect_b32 s{sU}, s{sTY}, s{sU}', f's_cselect_b32 s{sTY}, 1, 0'],
            f's_mul_i32 s{sU}, s{sU}, 1152', f's_add_u32 s{sU}, s{sU}, s{sCG}',
            f'v_mul_u32_u24 v{vPV+1}, s{sTY}, v{vPV+2}', f'v_add_u32 v{vPV+1}, v{vPV+1}, v{vPV}',
            f's_mov_b32 s{sCG}, {16*1152 - 1024}',
            [f's_cmp_ge_u32 s{sKB}, 144', f's_cselect_b32 s{sCG}, {18*1152 - 1024}, s{sCG}'],
            [f's_cmp_ge_u32 s{sKB}, 160', f's_cselect_b32 s{sCG}, {36*1152 - 1024}, s{sCG}'],
            f's_mul_i32 s{sTY}, s{sTY}, {136*1152}', f's_add_u32 s{sTY}, s{sTY}, {8*1152}']
    pt_dma1 = []
    for qh in (0, 1):
        g = [f's_add_u32 m0, s{sLB}, {16384 + qh*4096}']
        if qh: g += [f's_add_u32 s{sU}, s{sU}, s{sTY}']
        g += [f's_add_u32 s{sKB}, s{sU}, s{sCG}',
              I(f'buffer_load_dwordx4 v{vPV+1}, {sr(sB)}, s{sU} offen lds', 'PT1'),
              I(f'buffer_load_dwordx4 v{vPV+1}, {sr(sB)}, s{sKB} offen offset:1024 lds', 'PT1')]
        pt_dma1.append(g)
    S.place(seq('PT', pt), sp(10, 0.55), sp(11, 0.4))
    S.at(sp(11, 0.5), seq('PT', pt_dma0[0])); S.at(sp(12, 0.5), seq('PT', pt_dma0[1]))
    S.place(seq('PT', pt1), sp(12, 0.55), sp(14, 0.0))
    S.at(sp(14, 0.3), seq('PT', pt_dma1[0])); S.at(sp(16, 0.3), seq('PT', pt_dma1[1]))
    def pt_frag(un, f):
        b = SP + 4 * (f % 2)
        o = [f'v_and_b32 v{b+2}, 0xffff, v{vAF+f}', f'v_add_u32 v{b+2}, s{sLB}, v{b+2}']
        o += [[need(f'PT{un}'), f'ds_read_b64_tr_b16 {vr(b,2)}, v{b+2} offset:{un*16384}'], f'ds_read_b64_tr_b16 {vr(b+2,2)}, v{b+2} offset:{un*16384 + 1024}']
        return seq('PT', o), seq('PT', [f'buffer_store_dwordx4 {vr(b,4)}, v{vL16}, {sr(sWS)}, s{(sD0, sD1)[un]} offen offset:{f*1024} sc1'])
    for un, (pa, pb) in enumerate(((sp(18, 0.1), sp(20, 0.55)), (sp(23, 0.0), sp(25, 0.6)))):
        for f in range(4):
            g = pa + (f * (pb - pa)) // 4
            rd_, st_ = pt_frag(un, f)
            c = S.place(rd_, g, g + 6)
            S.place(st_, c + 10, c + 12)
    sF = 83
    fill = [f'v_mov_b32 v{SP+k}, -1' for k in range(4)]
    fill += [f's_lshl_b32 s{sF}, s2, 2', f's_add_u32 s{sF}, s{sF}, s{sW}', f's_mul_i32 s{sF}, s{sF}, 6912', f's_add_u32 s{sF}, s{sF}, {X_OFF}']
    fst = []
    for k in range(7):
        fst.append(([f's_add_u32 s{sF}, s{sF}, {4096 - 256}'] if k == 4 else []) +
                   [f'buffer_store_dwordx4 {vr(SP,4)}, v{vL16}, {sr(sWS)}, s{sF} offen offset:{(k%4)*1024} sc1'])
    FS = opt.get('fill', (4, 0.0, 8, 0.5))
    pro_fill = []
    if FS == 'pro':
        pro_fill = seq('FILL', fill) + seq('FILL', fst)
    else:
        c = S.place(seq('FILL', fill), sp(FS[0], FS[1]) - 12, sp(FS[0], FS[1]))
        S.place(seq('FILL', fst), c + 1, sp(FS[2], FS[3]))

    T0, T1, T3A, T3B = TMP, TMP + 8, TMP + 16, TMP + 24
    cur = -1
    for f in range(4):
        for t in range(4):
            d = {0: T0 + 2 * t, 1: T1 + 2 * t, 2: PQ + 4 * t, 3: T3A + 2 * t}[f]
            a = acc(f, t)
            lo = max(cur, done_pos(17, f, t) + 4)
            cur = S.place([f'v_cvt_pk_bf16_f32 v{d}, v{a}, v{a+1}', f'v_cvt_pk_bf16_f32 v{d+1}, v{a+2}, v{a+3}'], lo, lo + 2)
    assert cur < first_pos(18, 0, 0) - 2
    p_att = cur + 1
    def phi(r, mask=None):
        a, b, c, d = vS, vS + 1, vS + 2, vS + 3
        o = [f'v_lshlrev_b32 v{a}, 16, v{r}', f'v_and_b32 v{b}, 0xffff0000, v{r}',
             f'v_mul_f32 v{c}, {LOG2E}, v{a}', f'v_mul_f32 v{d}, {LOG2E}, v{b}',
             f'v_exp_f32_e64 v{c}, v{c} clamp', f'v_exp_f32_e64 v{d}, v{d} clamp',
             f'v_max_f32 v{a}, {EPS6}, v{a}', f'v_max_f32 v{b}, {EPS6}, v{b}',
             f'v_add_f32 v{a}, v{a}, v{c}', f'v_add_f32 v{b}, v{b}, v{d}']
        if mask is None:
            o += [f'v_cvt_pk_bf16_f32 v{r}, v{a}, v{b}']
        else:
            o += [f'v_cvt_pk_bf16_f32 v{a}, v{a}, v{b}', f'v_cndmask_b32 v{r}, v{r}, v{a}, {sr(mask,2)}']
        return o
    att1 = []
    for k in range(8): att1 += phi(T3A + k, mPHI)
    att1 += [f'v_mov_b32 v{vS}, 0x3f803f80'] + [f'v_cndmask_b32 v{T3B+k}, v{T3A+k}, v{vS}, {sr(mONE,2)}' for k in range(8)]
    for k in range(8): att1 += phi(T0 + k)
    KE = opt.get('kvend', (21, 0.0))
    cur = S.place(seq('ATT1', att1), p_att, sp(*KE))
    kvm = []
    for (dst, A, B) in ((SP, T0, T1), (SP + 4, T3A, T1), (T1, T0, T3B), (T1 + 4, T3A, T3B)):
        kvm += [f'{MFMA} {vr(dst,4)}, {vr(A,4)}, {vr(B,4)}, 0', f'{MFMA} {vr(dst,4)}, {vr(A+4,4)}, {vr(B+4,4)}, {vr(dst,4)}']
    a_kvw = vS
    assert cur >= bar_pos(21)
    kvw = [f'v_add_u32 v{a_kvw}, s{sW4K}, v{vL16}', f's_lshr_b32 s{sXo}, s{sW4K}, 2', f's_add_u32 s{sXo}, s{sXo}, {LDS_KV}',
           f'v_add_u32 v{a_kvw+1}, s{sXo}, v{vL16}', f'v_add_u32 v{a_kvw}, {LDS_KV}, v{a_kvw}']
    cur = S.place(seq('KV', kvm), cur + 1, cur + 9)
    cur = S.place(seq('KV', kvw), cur + 1, cur + 3)
    t3 = [f'v_and_b32 v{vS+2}, 0xf0, v{vL16}', f'v_lshlrev_b32 v{vS+2}, 1, v{vS+2}', f'v_lshrrev_b32 v{vS+3}, 8, v{vL16}',
          f'v_lshl_add_u32 v{vS+2}, v{vS+3}, 3, v{vS+2}', f'v_add_u32 v{vS+2}, s{sXo}, v{vS+2}']
    t3 += [f'ds_write_b64 v{vS+2}, {vr(T3A+2*t,2)} offset:{(t>>1)*4096 + (t&1)*512}' for t in range(4)]
    t3 += [f'v_bfe_u32 v{vS+3}, v{vL16}, 6, 2', f'v_lshlrev_b32 v{vS+3}, 5, v{vS+3}', f'v_bfe_u32 v{vS+2}, v{vL16}, 4, 2',
           f'v_lshl_add_u32 v{vS+3}, v{vS+2}, 3, v{vS+3}', f'v_add_u32 v{vS+3}, s{sXo}, v{vS+3}']
    t3 += [f'ds_read_b64_tr_b16 {vr(PQ+4*t+2,2)}, v{vS+3} offset:{(t>>1)*4096 + (t&1)*512 + 320}' for t in range(4)]
    cur = S.place(seq('KV', t3), cur + 1, cur + 12)
    wr = [I(f'ds_write_b128 v{a_kvw+1}, {vr(src,4)} offset:{n_*4096}', 'KVW') for n_, src in enumerate((SP, SP + 4, T1, T1 + 4))]
    cur = S.place(seq('KV', wr), cur + 1, cur + 4)
    KB = opt.get('kvbar', 22)
    assert cur < bar_pos(KB) - 4, (cur, bar_pos(KB))
    pub = [f'ds_read_b128 {vr(TMP+4*k,4)}, v{a_kvw} offset:{k*1024}' for k in range(4)]
    pub += [f's_lshl_b32 s{sXo}, s{sJ}, 2', f's_add_u32 s{sXo}, s{sXo}, s{sW}', f's_lshl_b32 s{sXo}, s{sXo}, 3', f's_add_u32 s{sXo}, s{sXo}, s{sI}',
            f's_lshl_b32 s{sXo}, s{sXo}, 10', f's_add_u32 s{sXo}, s{sXo}, {KV_OFF}']
    pub += [f'v_add_f32 v{TMP+r}, v{TMP+r}, v{TMP+4+r}' for r in range(4)]
    pub += [f'v_add_f32 v{TMP+8+r}, v{TMP+8+r}, v{TMP+12+r}' for r in range(4)]
    pub += [f'v_add_f32 v{TMP+r}, v{TMP+r}, v{TMP+8+r}' for r in range(4)]
    pub += [I(f'buffer_store_dwordx4 {vr(TMP,4)}, v{vL16}, {sr(sWS)}, s{sXo} offen sc1', 'KVP')]
    lo = max(cur + 1, bar_pos(KB) + 1)
    cur = S.place(seq('KV', pub), lo, lo + 16)
    p_pub = cur
    att2 = []
    for t in range(4): att2 += phi(PQ + 4 * t) + phi(PQ + 4 * t + 1)
    for t in range(4):
        g_ = PQ + 4 * t + 3
        att2 += [f'v_cndmask_b32 v{g_-1}, 0, v{g_-1}, {sr(mQ0,2)}', f'v_lshlrev_b32 v{vS}, 16, v{g_}', f'v_mul_f32 v{vS}, {NLOG2E}, v{vS}',
                 f'v_exp_f32 v{vS}, v{vS}', f'v_add_f32 v{vS}, 1.0, v{vS}', f'v_rcp_f32 v{vS}, v{vS}',
                 f'v_cvt_pk_bf16_f32 v{vS}, v{vS}, v{vS}', f'v_and_b32 v{g_}, 0xffff0000, v{vS}', f'v_sub_f32 v{vS+1}, 1.0, v{g_}',
                 f'v_bfe_u32 v{vS+2}, v{vL16}, 4, 4', f'v_lshlrev_b32 v{vS+2}, 2, v{vS+2}',
                 f'buffer_store_dword v{vS+1}, v{vS+2}, {sr(sWS)}, s{sG} offen offset:{t*64}']
    SG = opt.get('kvsig', (24, 0.1))
    S.place(signal('KVP', 1), sp(*SG), sp(*SG) + 2)
    cur = S.place(seq('ATT2', att2), cur + 1, sp(25, 0.4))
    PK = opt.get('kvpoll', (25, 0.6, 26, 0.0))
    poll('kv', 1, sp(PK[0], PK[1]), sp(PK[2], PK[3]) + 1)
    p_g = sp(PK[2], PK[3]) + 4
    gat = [f's_lshl_b32 s{sXo}, s{sJ}, 2', f's_add_u32 s{sXo}, s{sXo}, s{sW}', f's_lshl_b32 s{sXo}, s{sXo}, 13', f's_add_u32 s{sXo}, s{sXo}, {KV_OFF}']
    for k in range(8):
        if k == 4: gat.append(f's_add_u32 s{sXo}, s{sXo}, 4096')
        gat.append(f'buffer_load_dwordx4 {vr(TMP+4*k,4)}, v{vL16}, {sr(sWS)}, s{sXo} offen offset:{(k%4)*1024} sc1')
    cur = S.place(seq('GAT', gat), p_g, p_g + 14)
    stB = ffn_epi(26, [(4, 6, 3072), (0, 2, 2048)], 4, sH, lambda fe: (first_pos(27, 4, 0) - 2) if fe == 4 else sp(30, 0.9),
                  lambda fe, t: (SP + 4 * t if t < 2 else acc(5, t)) if fe == 4 else acc(1, t), opt.get('bflag', 'sc1'))
    stB = [stB[2], stB[3], stB[0], stB[1]] + stB[4:]
    BP = opt.get('bpace', (26, 0.6, 34, 0.9))
    pace(stB, sp(BP[0], BP[1]), sp(BP[2], BP[3]))
    def touch_h(imm, own):
        return seq(own, [f'v_lshrrev_b32 v{vPOLL}, 8, v{vL16}', f'v_xor_b32 v{vPOLL}, s{sPAR2}, v{vPOLL}', f'v_mul_u32_u24 v{vPOLL}, {HROW//8}, v{vPOLL}',
                         f'v_and_or_b32 v{vPOLL}, v{vL16}, s{sT0F}, v{vPOLL}', f'v_lshlrev_b32 v{vPOLL}, 3, v{vPOLL}',
                         f'buffer_load_dword v{vPOLL}, v{vPOLL}, {sr(sWS)}, s{sHB} offen offset:{imm}'])
    if opt.get('touch', 0):
        S.place([f's_mov_b32 s{sT0F}, 0xf0', f's_mul_i32 s{sHB}, s{sPAR2}, {HROW}', f's_sub_u32 s{sHB}, s{sH}, s{sHB}'], sp(18, 0.5), sp(18, 0.6))
        S.place(touch_h(0, 'TA'), sp(19, 0.0), sp(19, 0.3))
        tw = [f's_lshr_b32 s{sXo}, s2, 3', f's_lshl_b32 s{sXo}, s{sXo}, 2', f's_add_u32 s{sXo}, s{sXo}, s{sW}',
              f's_and_b32 s{sPT}, s2, 3', f's_mul_i32 s{sPT+1}, s{sPT}, {32*36*1024}', f's_mul_i32 s{sPT+2}, s{sXo}, 9216',
              f's_add_u32 s{sPT+1}, s{sPT+1}, s{sPT+2}', f's_add_u32 s{sPT+1}, s{sPT+1}, {WP_OFF}',
              f'v_lshlrev_b32 v{vPOLL}, 3, v{vL16}', f'buffer_load_dword v{vS+2}, v{vPOLL}, {sr(sWS)}, s{sPT+1} offen',
              f's_mul_i32 s{sPT}, s{sPT}, {u32((4 - 32)*36*1024)}', f's_mul_i32 s{sPT+2}, s{sXo}, {u32(1152 - 9216)}', f's_add_u32 s{sPT}, s{sPT}, s{sPT+2}',
              f's_add_u32 s{sPT}, s{sPT}, {128*36*1024 - 1024}',
              f'v_mov_b32 v{vS+3}, 8192', f'v_mov_b32 v{vS+2}, s{sPT}', f'v_cmp_gt_u32 vcc, {8*128}, v{vPOLL}', f'v_cndmask_b32 v{vS+3}, v{vS+2}, v{vS+3}, vcc',
              f'v_add_u32 v{vS+2}, 588672, v{vS+2}', f'v_cmp_gt_u32 vcc, {17*128}, v{vPOLL}', f'v_cndmask_b32 v{vS+3}, v{vS+2}, v{vS+3}, vcc',
              f'v_mov_b32 v{vS+2}, {HUGE}', f'v_cmp_gt_u32 vcc, {26*128}, v{vPOLL}', f'v_cndmask_b32 v{vS+3}, v{vS+2}, v{vS+3}, vcc',
              f'v_add_u32 v{vPOLL}, v{vPOLL}, v{vS+3}', f'buffer_load_dword v{vPOLL}, v{vPOLL}, {sr(sWS)}, s{sPT+1} offen']
        TW = opt.get('tw', (26, 0.3, 26, 0.95))
        S.place(seq('TW', tw), sp(TW[0], TW[1]), sp(TW[2], TW[3]))
    sm = []
    for (a, b) in ((0, 4), (8, 12), (16, 20), (24, 28), (0, 8), (16, 24), (0, 16)):
        sm += [f'v_add_f32 v{TMP+a+r}, v{TMP+a+r}, v{TMP+b+r}' for r in range(4)]
    sm += [f's_lshr_b32 s{sXo}, s{sW4K}, 2', f's_add_u32 s{sXo}, s{sXo}, {LDS_KV}', f'v_add_u32 v{vS}, s{sXo}, v{vL16}',
           I(f'ds_write_b128 v{vS}, {vr(TMP,4)}', 'KVW2')]
    KB2 = opt.get('kvbar2', 30)
    cur = S.place(seq('FIN', sm), sp(27, 0.5), bar_pos(KB2) - 3)
    KA = TMP + 16
    fin = [f'v_add_u32 v{vS}, {LDS_KV}, v{vL16}']
    fin += [f'ds_read_b128 {vr(TMP+4*k,4)}, v{vS} offset:{k*1024}' for k in range(4)]
    fin += [f'v_mov_b32 v{KA+3}, 0', f'v_mov_b32 v{KA+7}, 0']
    for e in range(2):
        a, b = TMP + 8 * e, TMP + 8 * e + 4
        fin += [f'v_cvt_pk_bf16_f32 v{KA+4*e}, v{a}, v{a+1}', f'v_cvt_pk_bf16_f32 v{KA+4*e+1}, v{a+2}, v{a+3}',
                f'v_cvt_pk_bf16_f32 v{KA+4*e+2}, v{b+2}, v{b+3}', f'v_cndmask_b32 v{KA+4*e+2}, 0, v{KA+4*e+2}, {sr(mQ0,2)}']
    N0 = lambda t: acc(4 + t, 2)
    N1 = lambda t: acc(4 + t, 3)
    for t in range(4):
        fin += [f'{MFMA} {vr(N1(t),4)}, {vr(KA+4,4)}, {vr(PQ+4*t,4)}, 0', f'{MFMA} {vr(N0(t),4)}, {vr(KA,4)}, {vr(PQ+4*t,4)}, 0']
    vO2 = TMP
    fin += [f's_lshr_b32 s{sPT}, s{sJ}, 4', f's_lshr_b32 s{sPT+1}, s{sJ}, 1', f's_sub_u32 s{sPT}, s{sPT}, s{sPT+1}', f's_add_u32 s{sPT}, s{sPT}, 16',
            f's_lshl_b32 s{sPT}, s{sPT}, 10', f's_bfe_u32 s{sPT+1}, s{sJ}, 0x20002', f's_lshl_b32 s{sPT+1}, s{sPT+1}, 8', f's_add_u32 s{sPT}, s{sPT}, s{sPT+1}',
            f's_and_b32 s{sPT+1}, s{sJ}, 3', f's_lshl_b32 s{sPT+1}, s{sPT+1}, 2', f's_add_u32 s{sPT}, s{sPT}, s{sPT+1}',
            f's_lshl_b32 s{sPT+1}, s{sPAR2}, 2', f's_sub_u32 s{sPT}, s{sPT}, s{sPT+1}', f's_sub_u32 s{sPT}, s{sPT}, 256',
            f'v_add_u32 v{vO2}, s{sPT}, v{vL16}',
            f's_mov_b32 s{mONE}, 0xffff0000', f's_mov_b32 s{mONE+1}, 0', f'v_mov_b32 v{vS}, {HUGE}',
            f'v_cndmask_b32 v{vO2}, v{vS}, v{vO2}, {sr(mONE,2)}']
    for t in range(4):
        n0, n1 = N0(t), N1(t)
        fin += [f'v_add_f32 v{n1}, {EPS6}, v{n1}', f'v_rcp_f32 v{n1}, v{n1}', f'v_mul_f32 v{n1}, v{n1}, v{PQ+4*t+3}']
        fin += [f'v_mul_f32 v{n0+r}, v{n0+r}, v{n1}' for r in range(4)]
        fin += [f'v_mul_f32 v{n1+2}, v{n1+2}, v{n1}', f'v_mul_f32 v{n1+3}, v{n1+3}, v{n1}',
                f'v_cvt_pk_bf16_f32 v{n0}, v{n0}, v{n0+1}', f'v_cvt_pk_bf16_f32 v{n0+1}, v{n0+2}, v{n0+3}', f'v_cvt_pk_bf16_f32 v{n1+2}, v{n1+2}, v{n1+3}',
                f'buffer_store_dwordx2 {vr(n0,2)}, v{vL16}, {sr(sWS)}, s{sOo+t} offen', f'buffer_store_dword v{n1+2}, v{vO2}, {sr(sWS)}, s{sOo+t} offen']
    S.place(seq('FIN', fin), bar_pos(KB2) + 1, NP - 2)
    stC = ffn_epi(35, [(4, 6, 0)], 2, sHC, lambda fe: NP, lambda fe, t: acc(5, t), opt.get('cflag', ''))
    if opt.get('touch', 0): S.place(touch_h(2048, 'TB'), sp(35, 0.0), NP - 2)
    for e, st_ in stC: S.at(NP - 1, st_)

    if diag:
        for k in range(1, 36): S.at(sp(k, 0), st.take(f's{k}'))

    vL = 12
    P = []
    P += ['s_cmp_ge_u32 s2, 256', 's_cbranch_scc1 L_k1_end']
    P += st.take('start')
    P += ['s_load_dwordx16 s[32:47], s[0:1], 0', 's_load_dwordx4 s[48:51], s[0:1], 72', f's_memrealtime s[{sNON}:{sNON+1}]',
          'v_lshrrev_b32 v1, 6, v0', f'v_and_b32 v{vL}, 63, v0', f'v_readfirstlane_b32 s{sW}, v1',
          's_and_b32 s3, s2, 3', f's_bfe_u32 s{sPAR2}, s2, 0x30003', f's_lshl_b32 s{sJ}, s3, 3', f's_add_u32 s{sJ}, s{sJ}, s{sPAR2}',
          f's_and_b32 s{sI}, s2, 4', f's_lshr_b32 s{sO1}, s2, 6', f's_add_u32 s{sI}, s{sI}, s{sO1}']
    rm = opt.get('rot', (0, 0, 0, 0))
    P += [f's_mul_i32 s{sP}, s{sO1}, {rm[0]}', f's_mul_i32 s{sO0}, s{sPAR2}, {rm[1]}', f's_add_u32 s{sP}, s{sP}, s{sO0}',
          f's_mul_i32 s{sO0}, s3, {rm[2]}', f's_add_u32 s{sP}, s{sP}, s{sO0}',
          f's_bfe_u32 s{sO0}, s2, 0x10002', f's_mul_i32 s{sO0}, s{sO0}, {rm[3]}', f's_add_u32 s{sP}, s{sP}, s{sO0}',
          f's_mul_i32 s{sO0}, s{sP}, 7282', f's_lshr_b32 s{sO0}, s{sO0}, 16', f's_mul_i32 s{sO0}, s{sO0}, 9', f's_sub_u32 s{sP}, s{sP}, s{sO0}']
    def nextp(k): return [f's_add_u32 s{sP+k}, s{sP+k-1}, 1', f's_cmp_eq_u32 s{sP+k}, 9', f's_cselect_b32 s{sP+k}, 0, s{sP+k}']
    P += [f's_and_b32 s{sPAR2}, s{sPAR2}, 1', f's_lshl_b32 s{sPAR2}, s{sPAR2}, 1', f's_mov_b32 s{sXo2}, {8*1152 - 1024}',
          f'v_lshlrev_b32 v{vL16}, 4, v{vL}',
          f'v_lshrrev_b32 v13, 3, v{vL}', 'v_lshrrev_b32 v14, 2, v13', 'v_and_b32 v15, 3, v13', 'v_lshl_add_u32 v14, v14, 3, v15',
          'v_lshrrev_b32 v13, 1, v13', 'v_lshlrev_b32 v13, 5, v13', f'v_and_b32 v15, 0x70, v{vL16}', 'v_xor_b32 v13, v13, v15',
          f'v_mul_u32_u24 v{vAB}, 9216, v14', f'v_add_u32 v{vAB}, v{vAB}, v13', f'v_lshl_add_u32 v{vCQ}, v14, 7, v13',
          f'v_lshrrev_b32 v13, 3, v{vL}', 'v_mul_u32_u24 v13, 1152, v13', f'v_and_b32 v14, 0x70, v{vL16}', f'v_and_b32 v15, 0x30, v{vL}',
          'v_xor_b32 v14, v14, v15', f'v_add_u32 v{vXV}, v13, v14', 'v_xor_b32 v14, 64, v14', f'v_add3_u32 v{vXV+1}, v13, v14, s{sXo2}',
          f's_lshl_b32 s{sW4K}, s{sW}, 12',
          f's_mul_i32 s{sAB}, s{sW}, {16*9216}', f's_lshl_b32 s{sO0}, s{sJ}, 8', f's_add_u32 s{sAB}, s{sAB}, s{sO0}',
          f's_lshl_b32 s{sO0}, s{sI}, 2', f's_add_u32 s{sO0}, s{sO0}, s{sW}', f's_lshl_b32 s{sO0}, s{sO0}, 2']
    for t in range(4):
        P += [f's_xor_b32 s{sH+t}, s{sPAR2}, {t}', f's_add_u32 s{sH+t}, s{sH+t}, s{sO0}',
              f's_mul_i32 s{sXT+t}, s{sH+t}, 18432'] + ([f's_sub_u32 s{sXT+t}, s{sXT+t}, 2048'] if t % 2 else [])
    P += [f's_lshl_b32 s{sXB}, s{sW}, 13', f's_add_u32 s{sXB}, s{sXB}, 98304']
    P += ['s_waitcnt lgkmcnt(0)']
    P += srd(sWG, pWG, 576 * 9216)
    P += [f's_sub_u32 s{sWU}, s{pWU}, 2048', f's_subb_u32 s{sWU+1}, s{pWU+1}, 0', f's_mov_b32 s{sWU+2}, {576*9216+2048}', f's_mov_b32 s{sWU+3}, 0x00020000']
    P += srd(sX, pX, 2048 * 1152)
    P += dma_group(0) + x_group(0)
    P += srd(sA, pQKV, 576 * 3456) + srd(sB, pGW, 1152) + srd(sWS, pWS, WS_BYTES) + srd(sDBG, pDBG, 256)
    P += [f's_or_b32 s{sNON}, s{sNON}, 1', f'v_mov_b32 v13, s{sNON}', f's_or_b32 s{sO0}, s2, s{sW}', f's_cmp_eq_u32 s{sO0}, 0', f's_cselect_b32 s{sO0}, 0, {HUGE}',
          f'v_lshlrev_b32 v14, 8, v{vL}', f'buffer_store_dword v13, v14, {sr(sDBG)}, s{sO0} offen sc1']
    for k in range(1, 9): P += nextp(k)
    P += [f's_mul_i32 s{sCQ}, s{sJ}, 73728', f's_add_u32 s{sCQ}, s{sCQ}, {CQ_OFF}',
          f's_lshl_b32 s{sFL}, s{sJ}, 8', f's_add_u32 s{sFL}, s{sFL}, {FL_OFF}']
    P += [
          f's_lshl_b32 s{sO0}, s{sW}, 11', f's_add_u32 s{sCQ}, s{sCQ}, s{sO0}',
          f's_mul_i32 s{sC}, s{sW}, {16*9216}', f's_lshr_b32 s{sO0}, s{sJ}, 1', f's_lshl_b32 s{sO1}, s{sO0}, 6', f's_add_u32 s{sC}, s{sC}, s{sO1}',
          f's_add_u32 s{sC}, s{sC}, 8192',
          f's_add_u32 s{sO0}, s{sO0}, 128', f's_lshl_b32 s{sO0}, s{sO0}, 10']
    for t in range(4):
        P += [f's_mul_i32 s{sH+t}, s{sH+t}, {HROW}']
        if t < 2: P += [f's_add_u32 s{sHC+t}, s{sH+t}, s{sO0}']
    P += [f's_add_u32 s{sO1}, s{sO0}, 16384', f's_lshl_b32 s{sO0}, s{sPAR2}, 2', f's_add_u32 s{sO1}, s{sO1}, s{sO0}', f's_lshl_b32 s{sO0}, s{sJ}, 12']
    for t in range(4):
        P += [f's_add_u32 s{sOo+t}, s{sH+t}, s{sO1}', f's_add_u32 s{sH+t}, s{sH+t}, s{sO0}']
    P += [f's_lshl_b32 s{sG}, s{sI}, 2', f's_add_u32 s{sG}, s{sG}, s{sW}', f's_lshl_b32 s{sG}, s{sG}, 8', f's_add_u32 s{sG}, s{sG}, {G_OFF}',
          f's_cmp_eq_u32 s{sJ}, 0', f's_cselect_b32 s{sG}, s{sG}, {HUGE}',
          f's_mov_b32 s{mG15}, 0x80008000', f's_mov_b32 s{mG15+1}, 0x80008000', f's_mov_b32 s{mPHI}, 0x0f0f0f0f', f's_mov_b32 s{mPHI+1}, 0x0f0f0f0f',
          f's_mov_b32 s{mONE}, 0x11111111', f's_mov_b32 s{mONE+1}, 0x11111111', f's_mov_b32 s{mQ0}, 0xffff', f's_mov_b32 s{mQ0+1}, 0',
          f'v_lshrrev_b32 v13, 5, v{vL}', 'v_lshlrev_b32 v13, 12, v13', f'v_and_b32 v14, 3, v{vL}', 'v_lshl_add_u32 v13, v14, 3, v13',
          f'v_bfe_u32 v14, v{vL}, 2, 3', 'v_lshl_add_u32 v15, v14, 7, v13', 'v_lshrrev_b32 v14, 1, v14', f'v_lshl_add_u32 v{vAF}, v14, 5, v15',
          f'v_xor_b32 v{vAF+1}, 32, v{vAF}', f'v_xor_b32 v{vAF+2}, 64, v{vAF}', f'v_xor_b32 v{vAF+3}, 0x60, v{vAF}',
          f'v_bfe_u32 v14, v{vL}, 4, 1', 'v_mul_u32_u24 v14, 544, v14', f'v_bfe_u32 v15, v{vL}, 2, 2', 'v_lshl_add_u32 v14, v15, 6, v14',
          f'v_add_u32 v{vAC}, v13, v14', f'v_xor_b32 v{vAC}, {(slot(27)//4) * 0x10000}, v{vAC}', f'v_xor_b32 v{vAC+1}, 32, v{vAC}',
          f'v_and_b32 v13, 15, v{vL}', 'v_lshrrev_b32 v14, 1, v13', f'v_lshrrev_b32 v15, 4, v{vL}', 'v_xor_b32 v14, v14, v15',
          'v_lshlrev_b32 v14, 4, v14', 'v_lshl_add_u32 v14, v13, 7, v14', f'v_add_u32 v{vXA}, s{sXB}, v14', f'v_xor_b32 v{vXA+1}, 64, v{vXA}',
          f'v_lshrrev_b32 v13, 2, v{vL}', 'v_mul_u32_u24 v13, 9216, v13', f'v_and_b32 v14, 0x30, v{vL16}', f'v_lshrrev_b32 v15, 5, v{vL}',
          'v_lshlrev_b32 v15, 5, v15', 'v_xor_b32 v14, v14, v15', f'v_add_u32 v{vC}, v13, v14',
          f's_lshl_b32 s{sO0}, s{sI}, 2', f's_add_u32 s{sO0}, s{sO0}, s{sW}', f's_lshl_b32 s{sO0}, s{sO0}, 2', f'v_mov_b32 v13, s{sO0}', f'v_mov_b32 v14, {HUGE}', f'v_cmp_eq_u32 vcc, 0, v{vL}',
          f'v_cndmask_b32 v{vDB}, v14, v13, vcc']
    if opt.get('pre', 1):
        P += [f'v_mov_b32 v13, {HUGE}', f'v_cmp_gt_u32 vcc, 18, v{vL}', f'v_lshlrev_b32 v14, 7, v{vL}', f'v_mul_u32_u24 v15, 9216, v{vL}',
              'v_cndmask_b32 v14, v13, v14, vcc', 'v_cndmask_b32 v15, v13, v15, vcc',
              f's_mul_i32 s{sO0}, s{sI}, 72', f's_mul_i32 s{sO1}, s{sW}, 18', f's_add_u32 s{sO0}, s{sO0}, s{sO1}', f's_mul_i32 s{sO0}, s{sO0}, 9216',
              f's_lshl_b32 s{sO1}, s{sJ}, 8', f's_add_u32 s{sO0}, s{sO0}, s{sO1}',
              f'buffer_load_dword v{TMP+20}, v15, {sr(sWG)}, s{sO0} offen', f'buffer_load_dword v{TMP+21}, v15, {sr(sWU)}, s{sO0} offen offset:2048',
              f's_lshl_b32 s{sO0}, s2, 2', f's_add_u32 s{sO0}, s{sO0}, s{sW}', f's_mul_i32 s{sO1}, s{sO0}, {18*128}',
              f'buffer_load_dword v{TMP+22}, v14, {sr(sX)}, s{sO1} offen', f's_lshl_b32 s{sO1}, s{sO0}, 11',
              f'buffer_load_dword v{TMP+23}, v14, {sr(sA)}, s{sO1} offen']
    P += pro_fill
    P += x_reads(0) + pro_tail
    P += st.take('first')
    P = mk(P)
    body = P + S.linear()
    E = st.take('end') + st.dump(pWS, sW, 0, 12) + ['L_k1_end:', 's_endpgm']
    res = st.expand(finalize(body + mk(E), 'k1'))
    n0 = len(P)
    main = [x for x in res]
    idx = next(k for k, x in enumerate(res) if x.kind == 'mfma')
    check_owner(res, TEMPS, idx)
    ex, hist, worst = gap_report(res)
    print('[k1] est. exposed filler cycles', ex, hist, worst[:20])
    return kernel_text(name, text(res) + text(mk(slow)), 512, 256), st.names


def gen_k2(name, opt):
    diag = opt.get('diag', False)
    st = Stamps(diag, 92, 14)
    sWS, sWP, sOUT = 4, 8, 12
    pOUT, pWS = 16, 20
    sW, sKQ, sR, sCc, sPAR, sTK = 24, 25, 26, 27, 28, 29
    sHt, sOt, sOt4 = 30, 32, 34
    sWB, sD0, sD1, sSO, sM0 = 36, 37, 38, 39, 40
    sT0, sT1, sT2 = 41, 42, 43
    sXS, sXR, sOs = 44, 47, 48
    mPAR = 54
    sWO, sGo = 56, 58
    sJW, sJH = 60, 61
    TEMPS = {'m0', 'scc', f's{sSO}'}
    vL16, vO, vLB, vG, vS, vL4, vOUT = 0, 1, 2, 6, 8, 12, 13
    WF = 16; NWS = 4
    ACC = 48
    HD = opt.get('hd', 5)
    HF = 120
    XR = HF
    def acc(t, f): return ACC + (t * 9 + f) * 4
    S = Sched()
    NPAIR = 21
    units = []; pair_pos = []
    def hreg(P_, t, kk): return vr(HF + 16 * (P_ % HD) + 8 * t + 4 * kk, 4)
    for P_ in range(NPAIR):
        pair_pos.append(S.n)
        for f in range(9):
            u = len(units); wb = WF + 8 * (u % NWS); p0 = S.n
            for t in range(2):
                kks = ((0, 1) if t == 0 else (1, 0)) if P_ < 20 else (0,)
                for n_, kk in enumerate(kks):
                    a = vr(acc(t, f), 4)
                    c = '0' if (P_ == 0 and n_ == 0) else a
                    S.mfma(f'{MFMA} {a}, {vr(wb+4*kk,4)}, {hreg(P_, t, kk)}, {c}')
            units.append((P_, f, p0, S.n - 1))
    pair_pos.append(S.n)
    NP = S.n
    def pp(P_, frac=0.0):
        a, b = pair_pos[P_], pair_pos[P_ + 1]
        return a + int((b - a) * frac) - 1
    def unit_reads(u):
        P_, f, p0, p1 = units[u]
        stg = P_ // 2; wb = WF + 8 * (u % NWS)
        return [I(f'ds_read_b128 {vr(wb+4*kk,4)}, v{vLB + stg % 4} offset:{((P_%2)*2+kk)*9216 + f*1024}', f'U{u}') for kk in ((0, 1) if P_ < 20 else (0,))]
    LA = NWS - 1
    pro_tail = []
    barp = {}
    for u in range(len(units)):
        P_, f = units[u][:2]
        pre = []
        if P_ % 2 == 0 and f == 0: pre = [need(f'W{P_//2}'), 's_barrier']
        if u < LA:
            pro_tail += pre + unit_reads(u); barp[0] = -1
        else:
            _, _, p0, p1 = units[u - LA]
            if pre:
                S.at(p0 - 1, pre); barp[P_ // 2] = p0 - 1
            S.place(unit_reads(u), p0, p1)
        if u > 0: S.tail_at(units[u][2] - 1, need(f'U{u}'))
    def dma_group(stg):
        tag = f'W{stg}'
        o = []
        if stg <= 9:
            for n_ in range(9):
                g = []
                if n_ % 4 == 0: g.append(f's_add_u32 m0, s{sM0}, {(stg % 4)*36864 + (n_//4)*4096}')
                g.append(f's_mov_b32 s{sSO}, s{sWB}' if n_ == 0 else f's_add_u32 s{sSO}, s{sSO}, s{sD1 if n_ % 4 == 0 else sD0}')
                g.append(I(f'buffer_load_dwordx4 v{vL16}, {sr(sWP)}, s{sSO} offen offset:{(n_%4)*1024} lds', tag))
                o.append(g)
            if stg < 7: o.append(f's_add_u32 s{sWB}, s{sWB}, {4*36*1024}')
            if stg == 7: o.append(f's_add_u32 s{sWB}, s{sWB}, s{sJW}')
            if stg == 8: o.append(f's_add_u32 s{sWB}, s{sWB}, {16*36*1024}')
        else:
            for n_ in range(3):
                g = []
                if n_ == 0: g += [f's_mul_i32 s{sSO}, s{sW}, 3072', f's_add_u32 m0, s{sSO}, {(stg % 4)*36864}', f's_mov_b32 s{sSO}, s{sWO+1}']
                else: g.append(f's_add_u32 s{sSO}, s{sSO}, s{sD0}')
                g.append(I(f'buffer_load_dwordx4 v{vL16}, {sr(sWP)}, s{sSO} offen offset:{n_*1024} lds', tag))
                o.append(g)
        return seq(tag, o)
    def h_group(P_):
        o = []
        for t in range(2):
            for kk in ((0, 1) if P_ < 20 else (0,)):
                n_ = 2 * P_ + kk
                o.append(f'buffer_load_dwordx4 {hreg(P_, t, kk)}, v{vL16}, {sr(sWS)}, s{sHt+t} offen offset:{(n_%4)*1024}')
        if P_ % 2 == 1:
            inc = {15: f's{sJH}', 17: str(16 * 1024), 19: f's{sJH+2}'}.get(P_, '4096')
            o += [f's_add_u32 s{sHt}, s{sHt}, {inc}', f's_add_u32 s{sHt+1}, s{sHt+1}, {inc}']
        return o
    wsch = {1: (0, .0, .6), 2: (1, .3, 2.4), 3: (2.5, 0, 4.2), 4: (4.3, 0, 5.8)}
    hsch = {1: (0, .62, .9), 2: (1, .0, 1.3), 3: (2.0, 0, 2.4), 4: (2.8, 0, 3.3), 5: (3.5, 0, 4.0), 6: (4.1, 0, 4.6), 7: (4.7, 0, 5.2), 8: (5.3, 0, 5.8), 9: (5.85, 0, 5.98)}
    wsch.update(opt.get('wsch', {})); hsch.update(opt.get('hsch', {}))
    def fp(x): return pp(int(x), x - int(x))
    for stg in range(1, 11):
        if stg in wsch:
            a, fa, b = wsch[stg]; lo, hi = fp(a + fa) + 1, fp(b)
        else:
            lo, hi = pp(2 * (stg - 2), 0.0) + 1, pp(2 * (stg - 2) + 1, 0.8)
        if stg >= 2: lo = max(lo, barp.get(stg - 2, -1) + 1)
        assert hi < barp[stg]
        S.place(dma_group(stg), lo, hi)
    last = -1
    for P_ in range(1, NPAIR):
        if P_ in hsch:
            a, fa, b = hsch[P_]; lo, hi = fp(a + fa) + 1, fp(b)
        else:
            q = P_ - (HD - 1); lo, hi = pp(q, 0.0) + 1, pp(q, 0.95)
        if P_ >= HD: assert lo > pp(P_ - HD + 1, 0.0)
        lo = max(lo, last); hi = max(hi, lo)
        last = S.place(h_group(P_), lo, hi)
    cur = -1
    for f in range(9):
        for t in range(2):
            u = 17 * 9 + f
            dn = units[u][2] + 2 * t + 1
            nx = units[u + 9][2] + 2 * t
            lo = max(cur, dn + 4)
            cur = S.place([f'v_mul_f32 v{acc(t,f)+r}, v{acc(t,f)+r}, v{vG+t}' for r in range(4)], lo, min(lo + 3, nx - 3))
            assert cur < nx - 1
    if diag:
        for k in range(1, 21): S.at(pp(k, 0), st.take(f'p{k}'))
        S.at(NP - 1, st.take('mend'))
    P = ['s_cmp_ge_u32 s2, 256', 's_cbranch_scc1 L_k2_end'] + st.take('start')
    P += ['s_load_dwordx4 s[16:19], s[0:1], 64', 's_load_dwordx2 s[20:21], s[0:1], 80',
          'v_lshrrev_b32 v1, 6, v0', f'v_and_b32 v{vS}, 63, v0', f'v_readfirstlane_b32 s{sW}, v1',
          f's_and_b32 s{sKQ}, s2, 3', f's_bfe_u32 s{sR}, s2, 0x10002', f's_lshl_b32 s{sR}, s{sR}, 3', f's_bfe_u32 s{sT0}, s2, 0x30003',
          f's_add_u32 s{sR}, s{sR}, s{sT0}', f's_lshr_b32 s{sCc}, s2, 6', f's_and_b32 s{sPAR}, s{sKQ}, 1', f's_lshr_b32 s{sTK}, s{sKQ}, 1',
          f'v_lshlrev_b32 v{vL16}, 4, v{vS}',
          f's_mul_i32 s{sM0}, s{sW}, 9216',
          f's_lshl_b32 s{sWB}, s{sKQ}, 5', f's_add_u32 s{sWB}, s{sWB}, s{sW}', f's_mul_i32 s{sWB}, s{sWB}, 36',
          f's_mul_i32 s{sT1}, s{sCc}, 9', f's_lshl_b32 s{sT0}, s{sPAR}, 3', f's_add_u32 s{sT1}, s{sT1}, s{sT0}',
          f's_add_u32 s{sWB}, s{sWB}, s{sT1}', f's_lshl_b32 s{sWB}, s{sWB}, 10',
          f's_mul_i32 s{sD0}, s{sPAR}, {u32(-2048)}', f's_add_u32 s{sD1}, s{sD0}, 4096',
          f's_lshl_b32 s{sT0}, s{sR}, 2', f's_add_u32 s{sT0}, s{sT0}, s{sW}', f's_lshl_b32 s{sT0}, s{sT0}, 1',
          f's_add_u32 s{sOt}, s{sT0}, s{sTK}', f's_xor_b32 s{sOt+1}, s{sOt}, 1',
          f's_lshl_b32 s{sT2}, s{sKQ}, 15',
          f's_mul_i32 s{sJH}, s{sKQ}, {u32(-28*1024)}', f's_add_u32 s{sJH}, s{sJH}, {100*1024}', f's_mul_i32 s{sJW}, s{sJH}, 36']
    for t in range(2):
        P += [f's_mul_i32 s{sHt+t}, s{sOt+t}, {HROW}', f's_add_u32 s{sHt+t}, s{sHt+t}, s{sT2}']
    P += ['s_waitcnt lgkmcnt(0)',
          f's_add_u32 s{sWP}, s{pWS}, {WP_OFF}', f's_addc_u32 s{sWP+1}, s{pWS+1}, 0', f's_mov_b32 s{sWP+2}, {WP_BYTES}', f's_mov_b32 s{sWP+3}, 0x00020000']
    P += srd(sWS, pWS, WS_BYTES)
    P += dma_group(0) + h_group(0)
    P += srd(sOUT, pOUT, 2048 * 1152)
    P += [f's_add_u32 s{sWO+1}, s{sKQ}, 160', f's_mul_i32 s{sWO+1}, s{sWO+1}, 36', f's_add_u32 s{sWO+1}, s{sWO+1}, s{sT1}', f's_lshl_b32 s{sWO+1}, s{sWO+1}, 10',
          f's_add_u32 s{sT2}, s{sD0}, 1024', f's_mul_i32 s{sT2}, s{sT2}, s{sW}', f's_mul_i32 s{sT2}, s{sT2}, 3', f's_add_u32 s{sWO+1}, s{sWO+1}, s{sT2}',
          f's_mul_i32 s{sJH+2}, s{sKQ}, {u32(-3*1024)}', f's_add_u32 s{sJH+2}, s{sJH+2}, {16*1024}',
          f's_cmp_ge_u32 s{sKQ}, 2', f's_cselect_b32 s{sJH+2}, {HUGE}, s{sJH+2}', f's_cselect_b32 s{sWO+1}, {HUGE}, s{sWO+1}']
    for t in range(2):
        P += [f's_lshl_b32 s{sGo+t}, s{sOt+t}, 6', f's_add_u32 s{sGo+t}, s{sGo+t}, {G_OFF}']
    P += [f's_mul_i32 s{sOs}, s{sOt}, 18432']
    P += [f'v_and_b32 v{vS+1}, 15, v{vS}', f'v_lshrrev_b32 v{vS+2}, 4, v{vS}', f'v_mul_u32_u24 v{vS+3}, 1152, v{vS+1}',
          f'v_lshl_add_u32 v{vOUT}, v{vS+2}, 3, v{vS+3}', f'v_lshlrev_b32 v{vL4}, 2, v{vS}',
          f'v_lshlrev_b32 v{vS+1}, 2, v{vS+1}']
    for t in range(2):
        P += [f'buffer_load_dword v{vG+t}, v{vS+1}, {sr(sWS)}, s{sGo+t} offen']
    for k in range(4):
        P += [f'v_add_u32 v{vLB+k}, {k*36864}, v{vL16}']
    P += [f's_lshl_b32 s{sT0}, s{sR}, 2', f's_add_u32 s{sT0}, s{sT0}, s{sCc}', f's_lshl_b32 s{sT0}, s{sT0}, 2']
    for d in range(1, 4):
        P += [f's_xor_b32 s{sT2}, s{sKQ}, {d}', f's_add_u32 s{sT2}, s{sT2}, s{sT0}', f's_mul_i32 s{sT2}, s{sT2}, 12', f's_add_u32 s{sT2}, s{sT2}, s{sW}',
              f's_add_u32 s{sT2}, s{sT2}, {4*(d-1)}', f's_mul_i32 s{sXS+d-1}, s{sT2}, 2304', f's_add_u32 s{sXS+d-1}, s{sXS+d-1}, {X_OFF}']
    P += [f's_add_u32 s{sT2}, s{sKQ}, s{sT0}', f's_mul_i32 s{sT2}, s{sT2}, 12', f's_add_u32 s{sT2}, s{sT2}, s{sW}',
          f's_mul_i32 s{sXR}, s{sT2}, 2304', f's_add_u32 s{sXR}, s{sXR}, {X_OFF}',
          f's_mul_i32 s{sT2}, s{sCc}, 288', f's_add_u32 s{sOs}, s{sOs}, s{sT2}',
          f's_lshl_b32 s{sT2}, s{sPAR}, 2', f's_add_u32 s{sOs+4}, s{sOs}, s{sT2}', f's_add_u32 s{sOs+4}, s{sOs+4}, 128',
          f's_lshl_b32 s{sT2}, s{sPAR}, 8', f's_add_u32 s{sOs}, s{sOs}, s{sT2}',
          f's_mul_i32 s{sT2}, s{sPAR}, {u32(-64)}', f's_add_u32 s{sT2}, s{sT2}, 32']
    for k in range(1, 4): P += [f's_add_u32 s{sOs+k}, s{sOs+k-1}, s{sT2}']
    P += [f's_sub_u32 s{mPAR}, 0, s{sPAR}', f's_sub_u32 s{mPAR+1}, 0, s{sPAR}']
    P += pro_tail + st.take('first')
    T = []
    SB = WF
    m = sr(mPAR, 2)
    HK = vS
    a0, a1 = acc(0, 4), acc(1, 4)
    def pack(dst, a): return [f'v_cvt_pk_bf16_f32 v{dst}, v{a}, v{a+1}', f'v_cvt_pk_bf16_f32 v{dst+1}, v{a+2}, v{a+3}']
    send = {1: [(0, 8), (0, 7), (0, 6), (0, 5)], 2: [(1, 0), (1, 1), (1, 2), (1, 3)], 3: [(1, 8), (1, 7), (1, 6), (1, 5)]}
    for d in (2, 3, 1):
        b = SB + 10 * (d - 1)
        for k, (t, f) in enumerate(send[d]):
            T += pack(b + 2 * k, acc(t, f))
            if k % 2 == 1:
                T += [f'buffer_store_dwordx4 {vr(b+2*k-2,4)}, v{vL16}, {sr(sWS)}, s{sXS+d-1} offen offset:{(k//2)*1024} sc1']
    T += pack(SB + 30, a1)
    T += [f'v_cndmask_b32 v{SB+18}, v{SB+30}, v{SB+31}, {m}', f'v_cndmask_b32 v{SB+28}, v{SB+31}, v{SB+30}, {m}']
    T += pack(SB + 30, a0)
    T += [f'v_cndmask_b32 v{SB+8}, v{SB+31}, v{SB+30}, {m}']
    for d in (2, 3, 1):
        T += [f'buffer_store_dword v{SB+10*(d-1)+8}, v{vL4}, {sr(sWS)}, s{sXS+d-1} offen offset:2048 sc1']
    T += [f'v_cndmask_b32 v{HK}, v{a0}, v{a0+2}, {m}', f'v_cndmask_b32 v{HK+1}, v{a0+1}, v{a0+3}, {m}']
    T += st.take('sent')
    T += [f's_mov_b32 s{sT0}, 5000', 'L_k2_recv:', f's_mov_b32 s{sT1}, s{sXR}']
    for d in range(3):
        b = XR + 12 * d
        if d: T += [f's_add_u32 s{sT1}, s{sT1}, {4*2304}']
        T += [f'buffer_load_dwordx4 {vr(b,4)}, v{vL16}, {sr(sWS)}, s{sT1} offen sc1',
              f'buffer_load_dwordx4 {vr(b+4,4)}, v{vL16}, {sr(sWS)}, s{sT1} offen offset:1024 sc1',
              f'buffer_load_dword v{b+8}, v{vL4}, {sr(sWS)}, s{sT1} offen offset:2048 sc1']
    mx = vS + 2
    first = True
    for d in range(3):
        b = XR + 12 * d
        for k in range(0, 9, 2):
            x, y = b + k, b + min(k + 1, 8)
            T += [f'v_max_u32 v{mx}, v{x}, v{y}' if first else f'v_max3_u32 v{mx}, v{x}, v{y}, v{mx}']
            first = False
    T += [f'v_cmp_eq_u32 vcc, -1, v{mx}', f's_sub_u32 s{sT0}, s{sT0}, 1', f's_cmp_eq_u32 s{sT0}, 0', 's_cbranch_scc1 L_k2_got',
          's_nop 2', 's_cbranch_vccnz L_k2_recv', 'L_k2_got:']
    T += st.take('got')
    keep = [acc(0, k) for k in range(4)]
    for k in range(9):
        lo_, hi_ = (keep[k // 2] + 2 * (k % 2), keep[k // 2] + 2 * (k % 2) + 1) if k < 8 else (HK, HK + 1)
        for d in range(3):
            x = XR + 12 * d + k
            T += [f'v_lshlrev_b32 v{vS+2}, 16, v{x}', f'v_and_b32 v{x}, 0xffff0000, v{x}', f'v_add_f32 v{lo_}, v{lo_}, v{vS+2}', f'v_add_f32 v{hi_}, v{hi_}, v{x}']
        if k < 8 and k % 2 == 1:
            a = keep[k // 2]
            T += pack(a, a) + [f'buffer_store_dwordx2 {vr(a,2)}, v{vOUT}, {sr(sOUT)}, s{sOs + k//2} offen']
    T += [f'v_cvt_pk_bf16_f32 v{HK}, v{HK}, v{HK+1}', f'buffer_store_dword v{HK}, v{vOUT}, {sr(sOUT)}, s{sOs+4} offen']
    E = st.take('end') + st.dump(pWS, sW, 1 << 18, 8) + ['L_k2_end:', 's_endpgm']
    P = mk(P)
    res = st.expand(finalize(P + S.linear() + mk(T) + mk(E), 'k2'))
    idx = next(k for k, x in enumerate(res) if x.kind == 'mfma')
    idx2 = max(k for k, x in enumerate(res) if x.kind == 'mfma')
    check_owner(res[:idx2], TEMPS, idx)
    ex, hist, worst = gap_report(res)
    print('[k2] est. exposed filler cycles', ex, hist, worst[:20])
    return kernel_text(name, text(res), HF + 16 * HD, ((HF + 16 * HD + 3) // 4) * 4), st.names


HEADER = open('gated_mix__linear_attn_block__glu_gated_bilinear__prompt.s.ref').read().split('; Override launch')[0]

def build(path, opt):
    k1, n1 = gen_k1('ffn_qkv_kernel', opt)
    k2, n2 = gen_k2('mix_out_kernel', opt)
    s = HEADER
    s += '; @launch kernel=ffn_qkv_kernel grid=(256,1,1) block=(256,1,1) lds=163840\n'
    s += '; @launch kernel=mix_out_kernel grid=(256,1,1) block=(256,1,1) lds=147456\n'
    s += '.amdgcn_target "amdgcn-amd-amdhsa--gfx950"\n' + k1 + k2
    open(path, 'w').write(s)
    return n1, n2

if __name__ == '__main__':
    out = sys.argv[1] if len(sys.argv) > 1 else 'k.s'
    opt = eval(sys.argv[2]) if len(sys.argv) > 2 else {}
    print(build(out, opt))
```

```python
import sys
from asmlib import *

H_OFF = 0
HROW = 162 * 1024
WP_OFF = 0x1500000
WP_BYTES = 162 * 36 * 1024
G_OFF = 0x1B00000
KV_OFF = 0x1C00000
CQ_OFF = 0x1D00000
FL_OFF = 0x1B80000
X_OFF = 0x2000000
WS_BYTES = 0x2800000
HUGE = 0x40000000
STAMP_OFF = 200 << 20

LOG2E = 0x3fb8aa3b
NLOG2E = 0xbfb8aa3b
EPS6 = 0x358637bd
MFMA = 'v_mfma_f32_16x16x32_bf16'

def srd(d, base, nbytes):
    return [f's_mov_b32 s{d}, s{base}', f's_mov_b32 s{d+1}, s{base+1}', f's_mov_b32 s{d+2}, {nbytes}', f's_mov_b32 s{d+3}, 0x00020000']

def vr(a, n): return f'v[{a}:{a+n-1}]'
def sr(a, n=4): return f's[{a}:{a+n-1}]'
def u32(x): return x & 0xffffffff

class Stamps:
    def __init__(self, on, base, vreg):
        self.on, self.base, self.vreg, self.names = on, base, vreg, []
    def take(self, name):
        if not self.on: return []
        i = I('s_nop 0'); i.tag = ('STAMP', name)
        return [i]
    def expand(self, res):
        if not self.on: return res
        out = []
        for x in res:
            if isinstance(x.tag, tuple) and x.tag[0] == 'STAMP':
                k = len(self.names); self.names.append(x.tag[1])
                cur, prv = self.base + 2 * (k % 2), self.base + 2 * ((k + 1) % 2)
                if k >= 1 and x.tag[1] != 'first0':
                    out += self.save(k - 1)
                i = I(f's_memrealtime s[{cur}:{cur+1}]'); i.kind = 'salu'; i.wr = []
                out.append(i)
            else: out.append(x)
        return out
    def save(self, k):
        r = self.base + 2 * (k % 2); t = self.base + 4
        o = mk([f's_bfe_u32 s{t}, s{r}, 0x1e0000', f's_bitset1_b32 s{t}, 30', f'v_writelane_b32 v{self.vreg}, s{t}, {k + 1}'])
        for i in o: i.wr = [w for w in i.wr if w != 'scc']; i.rd = []
        return o
    def dump(self, ws, wave, koff, vt):
        if not self.on: return []
        return [I('s_waitcnt vmcnt(0) lgkmcnt(0)'), self.take('dummy')[0],
                f's_add_u32 s4, s{ws}, {STAMP_OFF + koff}', f's_addc_u32 s5, s{ws+1}, 0', f's_mov_b32 s6, {1<<20}', 's_mov_b32 s7, 0x00020000',
                's_lshl_b32 s3, s2, 2', f's_add_u32 s3, s3, s{wave}', 's_lshl_b32 s3, s3, 8',
                f'v_mbcnt_lo_u32_b32 v{vt}, -1, 0', f'v_mbcnt_hi_u32_b32 v{vt}, -1, v{vt}', f'v_lshlrev_b32 v{vt}, 2, v{vt}',
                f'buffer_store_dword v{self.vreg}, v{vt}, s[4:7], s3 offen']

def kernel_text(name, body, vgpr, accum, sgpr=102):
    return f'''.text
.globl {name}
.p2align 8
.type {name},@function
{name}:
{body}.section .rodata,"a"
.p2align 6
.amdhsa_kernel {name}
  .amdhsa_next_free_vgpr {vgpr}
  .amdhsa_next_free_sgpr {sgpr}
  .amdhsa_accum_offset {accum}
  .amdhsa_group_segment_fixed_size 0
  .amdhsa_kernarg_size 88
  .amdhsa_user_sgpr_count 2
  .amdhsa_user_sgpr_kernarg_segment_ptr 1
  .amdhsa_system_sgpr_workgroup_id_x 1
.end_amdhsa_kernel
'''

def gen_k1(name, opt):
    diag = opt.get('diag', False)
    st = Stamps(diag, 92, 0)
    sX, sWG, sWU, sWS, sDBG, sA, sB = 4, 8, 12, 16, 20, 24, 28
    pX, pQKV, pWO, pWG, pWU, pWD, pGW, pDBG, pWS = 32, 34, 36, 40, 42, 44, 46, 48, 50
    sW, sJ, sI, sPAR2 = 52, 53, 54, 55
    sP = 56
    sW4K, sAB, sCQ, sC, sO0, sO1 = 65, 66, 67, 68, 69, 70
    sH, sHC = 71, 75
    sPT = 77
    sOo = 32
    sG, sPL, sXo = 38, 39, 3
    sT0F, sHB = 86, 87
    mG15, mPHI, mONE, mQ0 = 40, 42, 46, 48
    sRT = 77
    sXT, sXB, sXo2 = 86, 81, 82
    sNON, sFL = 84, 85
    TEMPS = {'m0', 'scc', 'vcc', f's{sO0}', f's{sO1}', f's{sXo}', f's{sPL}', 'v12', 'v13', 'v14', 'v15', 'v1'} | {f's{k}' for k in range(77, 84)}
    vDB, vPOLL = 0, 1
    vAF = 2; vAB = 6; vCQ = 7; vC = 8; vAC = 9; vL16 = 11; vS = 12
    WF = 16; ACC = 40; TMP = 168; XV = 200; PQ = 232; SP = 248
    def acc(f, t): return ACC + (f * 4 + t) * 4
    def xreg(ks, t):
        n = ks * 4 + t
        return f'a[{4*n}:{4*n+3}]' if n < 64 else vr(XV + 4 * (n - 64), 4)
    LDS_SCR = 131072
    LDS_KV = LDS_SCR
    def slot(stg): return stg if stg < 6 else (stg - 6) % 8

    S = Sched()
    units = []
    stage_pos = []
    for stg in range(36):
        ch, sg = divmod(stg, 9)
        order = {0: range(8), 1: range(4), 2: [4, 5, 6, 7, 0, 1, 2, 3], 3: [4, 5, 6, 7]}[ch]
        nt = 2 if ch == 3 else 4
        stage_pos.append(S.n)
        for f in order:
            u = len(units); wb = WF + 8 * (u % 3)
            p0 = S.n
            for t in range(nt):
                kks = (0, 1) if t % 2 == 0 else (1, 0)
                for n_, kk in enumerate(kks):
                    a = vr(acc(f, t), 4)
                    c = '0' if (sg == 0 and n_ == 0) else a
                    wv = vr(wb + 4 * kk, 4); xv = xreg(2 * sg + kk, t)
                    swap = (ch == 1 and f != 2)
                    S.mfma(f'{MFMA} {a}, {xv if swap else wv}, {wv if swap else xv}, {c}')
            units.append((stg, ch, f, p0, S.n - 1))
    stage_pos.append(S.n)
    NP = S.n
    def sp(stg, frac=0.0):
        a, b = stage_pos[stg], stage_pos[stg + 1]
        return a + int((b - a) * frac) - 1
    def done_pos(stg, f, t):
        for (s_, ch, f_, p0, p1) in units:
            if s_ == stg and f_ == f: return p0 + 2 * t + 1
        raise KeyError
    def first_pos(stg, f, t): return done_pos(stg, f, t) - 1
    def bar_pos(stg):
        u0 = next(k for k, u in enumerate(units) if u[0] == stg)
        return units[u0 - 2][3] - 1 if u0 >= 2 else -1

    def unit_reads(u):
        stg, ch, f, p0, p1 = units[u]
        wb = WF + 8 * (u % 3)
        base = (slot(stg) % 4) * 16384
        out = []
        for kk in (0, 1):
            for h in (0, 1):
                if ch == 3:
                    ff = f - 4
                    a, off = vAC + (ff >> 1), base + kk * 8192 + h * 256 + (ff & 1) * 2048
                elif ch == 1:
                    a, off = vAF + f, base + kk * 8192 + h * 1024
                else:
                    a, off = vAF + (f >> 1), base + kk * 8192 + h * 1024 + (f & 1) * 2048
                out.append(I(f'ds_read_b64_tr_b16 {vr(wb+4*kk+2*h, 2)}, v{a} offset:{off}', f'U{u}'))
        return out
    pro_tail = []
    extra_need = {}
    extra_need[opt.get('kvbar', 22)] = ['KVW']
    extra_need[opt.get('kvbar2', 30)] = ['KVW2']
    for u in range(len(units)):
        stg = units[u][0]
        pre = []
        if u == 0 or units[u - 1][0] != stg:
            pre = [[need(f'W{stg}', *extra_need.get(stg, [])), 's_barrier']]
            if stg > 0 and stg != 27 and slot(stg) // 4 != slot(stg - 1) // 4:
                regs = [vAF + k for k in range(4)] if stg < 27 else [vAC, vAC + 1]
                pre += [[f'v_xor_b32 v{r}, 0x10000, v{r}'] for r in regs]
        if u < 2:
            pro_tail += pre + unit_reads(u)
        else:
            _, _, _, p0, p1 = units[u - 2]
            if pre: S.at(p0 - 1, pre[0])
            S.place(pre[1:] + unit_reads(u), p0, p1 - 1)
        if u > 0: S.tail_at(units[u][3] - 1, need(f'U{u}'))

    def dma_group(stg):
        ch, sg = divmod(stg, 9)
        tag = f'W{stg}'
        m0 = f's_add_u32 m0, s{sW4K}, {slot(stg) * 16384}'
        if ch in (0, 2):
            o = [m0, f's_mul_i32 s{sO0}, s{sP+sg}, 589824', f's_add_u32 s{sO0}, s{sO0}, s{sAB}',
                 I(f'buffer_load_dwordx4 v{vAB}, {sr(sWG)}, s{sO0} offen lds', tag),
                 f's_add_u32 s{sO1}, s{sO0}, {36864-1024}',
                 I(f'buffer_load_dwordx4 v{vAB}, {sr(sWU)}, s{sO0} offen offset:2048 lds', tag),
                 I(f'buffer_load_dwordx4 v{vAB}, {sr(sWG)}, s{sO1} offen offset:1024 lds', tag),
                 I(f'buffer_load_dwordx4 v{vAB}, {sr(sWU)}, s{sO1} offen offset:3072 lds', tag)]
            if stg == 8: o.append(f's_add_u32 s{sAB}, s{sAB}, 128')
        elif ch == 1:
            o = [m0, f's_lshl_b32 s{sO0}, s{sP+sg}, 13', f's_add_u32 s{sO0}, s{sO0}, s{sCQ}',
                 I(f'buffer_load_dwordx4 v{vCQ}, {sr(sWS)}, s{sO0} offen sc1 lds', tag),
                 f's_sub_u32 s{sO1}, s{sO0}, 512',
                 I(f'buffer_load_dwordx4 v{vCQ}, {sr(sWS)}, s{sO1} offen offset:1024 sc1 lds', tag)]
        else:
            o = [m0, f's_mul_i32 s{sO0}, s{sP+sg}, 589824', f's_add_u32 s{sO0}, s{sO0}, s{sC}',
                 I(f'buffer_load_dwordx4 v{vC}, {sr(sWG)}, s{sO0} offen lds', tag),
                 I(f'buffer_load_dwordx4 v{vC}, {sr(sWU)}, s{sO0} offen offset:2048 lds', tag)]
        return seq(tag, o)
    vXV, vXA = PQ, PQ + 2
    def x_group(sg):
        o = [f's_lshl_b32 s{sXo}, s{sP+sg}, 7']
        for t in range(4):
            g = []
            if t % 2 == 0: o.append(f's_add_u32 m0, s{sXB}, {(32768 if sg % 2 == 0 else 0) + (t // 2) * 4096}')
            o.append(f's_add_u32 s{sXo2}, s{sXo}, s{sXT+t}')
            if sg >= 2 and t == 0: o.append(need(f'XR{sg-2}'))
            for n_ in (0, 1):
                o.append(I(f'buffer_load_dwordx4 v{vXV+n_}, {sr(sX)}, s{sXo2} offen offset:{(t%2)*2048 + n_*1024} lds', f'X{sg}t{t}'))
        return seq(f'X{sg}', o)
    def x_reads(sg):
        o = []
        for t in range(4):
            for kk in (0, 1):
                r = I(f'ds_read_b128 {xreg(2*sg+kk, t)}, v{vXA+kk} offset:{(32768 if sg % 2 == 0 else 0) + t*2048}', f'XR{sg}')
                o.append([need(f'X{sg}t{t}'), r] if kk == 0 else [r])
        return o
    xs = opt.get('xsched', {1: (0, 0, .4), 2: (0, .45, .95), 3: (1, .1, .95), 4: (2, .1, .95), 5: (3, .1, .95), 6: (4, .1, .95), 7: (5, .1, .95), 8: (6, .1, .95)})
    xr = opt.get('xread', (.6, .97))
    for sg in range(1, 9):
        s0, fa, fb = xs[sg]
        S.place(dma_group(sg) + x_group(sg), sp(s0, fa) + 1, sp(s0, fb))
        S.place(x_reads(sg), sp(sg - 1, xr[0] if sg > 1 else .8), sp(sg - 1, xr[1]))

    RT = TMP
    vRTs, vRTd, vRTg = TMP + 16, TMP + 17, TMP + 18
    rt_rows = [0, 4, 8, 12, 14]
    rt_proc = []
    for n_, r0 in enumerate(rt_rows):
        d = RT + 2 * n_; g_ = RT + 10 + n_
        rt_proc += [f'v_cndmask_b32 v{d}, v{d}, v{g_}, {sr(mG15,2)}', f'v_cndmask_b32 v{d+1}, v{d+1}, 0, {sr(mG15,2)}',
                    I(f'buffer_store_dwordx2 {vr(d,2)}, v{vRTd}, {sr(sWS)}, s{sRT} offen offset:{r0*128} sc1', 'CQ')]
    rt = [f's_mul_i32 s{sRT+2}, s{sI}, 72', f's_mul_i32 s{sRT+3}, s{sW}, 18', f's_add_u32 s{sRT+2}, s{sRT+2}, s{sRT+3}',
          f's_mul_i32 s{sRT}, s{sJ}, 576', f's_add_u32 s{sRT}, s{sRT}, s{sRT+2}', f's_lshl_b32 s{sRT}, s{sRT}, 7', f's_add_u32 s{sRT}, s{sRT}, {CQ_OFF}',
          f's_lshl_b32 s{sRT+1}, s{sRT+2}, 1',
          f's_mul_i32 s{sRT+2}, s{sRT+2}, 3456', f's_mul_i32 s{sRT+3}, s{sJ}, 36', f's_add_u32 s{sRT+2}, s{sRT+2}, s{sRT+3}',
          f'v_bfe_u32 v13, v{vL16}, 4, 4', f'v_lshrrev_b32 v14, 8, v{vL16}',
          f'v_lshlrev_b32 v{vRTg}, 1, v14', f'v_mul_u32_u24 v{vRTs}, 3456, v14', f'v_lshrrev_b32 v{vRTd}, 1, v{vL16}',
          'v_cmp_gt_u32 vcc, 12, v13', 'v_lshrrev_b32 v14, 2, v13', 'v_subrev_u32 v15, 12, v13', 'v_cndmask_b32 v14, v15, v14, vcc',
          'v_and_b32 v13, 3, v13', 'v_lshlrev_b32 v13, 3, v13', 'v_cndmask_b32 v13, 28, v13, vcc',
          'v_add_u32 v14, 1, v14', 'v_subrev_u32 v15, 3, v14', 'v_min_u32 v14, v14, v15', 'v_mul_u32_u24 v14, 1152, v14',
          f'v_add3_u32 v{vRTs}, v{vRTs}, v13, v14']
    rtl = []
    for n_, r0 in enumerate(rt_rows):
        rtl += [f's_add_u32 s{sRT+3}, s{sRT+2}, {r0*3456}',
                f'buffer_load_dwordx2 {vr(RT+2*n_,2)}, v{vRTs}, {sr(sA)}, s{sRT+3} offen',
                f'buffer_load_ushort v{RT+10+n_}, v{vRTg}, {sr(sB)}, s{sRT+1} offen offset:{r0*2}']
    RL = opt.get('rtload', (1, 0.0, 1, 0.9)); RP = opt.get('rtproc', (3, 0.0, 3, 0.5)); RG = opt.get('rtsig', (5, 0.3))
    S.place(seq('RT', rt), sp(0, 0.1), sp(0, 0.95))
    S.place(seq('RT', rtl), sp(RL[0], RL[1]) + 1, sp(RL[2], RL[3]))
    S.place(seq('RT', rt_proc), sp(RP[0], RP[1]) + 1, sp(RP[2], RP[3]))
    slow = []
    def signal(tag, kind):
        return seq('SIG' + tag, [f'v_mov_b32 v{vPOLL}, s{sNON}', [need(tag), f'buffer_store_dword v{vPOLL}, v{vDB}, {sr(sWS)}, s{sFL} offen offset:{kind*128} sc1']])
    def poll(lbl, kind, pos_load, pos_chk):
        nonlocal slow
        if kind is None:
            ld = [f'v_mov_b32 v{vPOLL}, 0', f'buffer_load_dword v{vPOLL}, v{vPOLL}, {sr(sDBG)}, 0 offen sc1']
            chk1 = [f'v_readfirstlane_b32 s{sNON}, v{vPOLL}']
            chk2 = [f's_cmp_lg_u32 s{sNON}, 0']; br_ok, br_bad = 's_cbranch_scc1', 's_cbranch_scc0'
        else:
            ld = [f'v_bfe_u32 v{vPOLL}, v{vL16}, 2, 7', f'buffer_load_dword v{vPOLL}, v{vPOLL}, {sr(sWS)}, s{sFL} offen offset:{kind*128} sc1']
            chk1 = [f'v_cmp_ne_u32 vcc, s{sNON}, v{vPOLL}']
            chk2 = []; br_ok, br_bad = 's_cbranch_vccz', 's_cbranch_vccnz'
        slow += [f'L_slow_{lbl}:', f's_mov_b32 s{sPL}, 20000', f'L_spin_{lbl}:', 's_sleep 2'] + ld + ['s_waitcnt vmcnt(0)'] + chk1 + [
                 's_nop 4', f's_sub_u32 s{sPL}, s{sPL}, 1', f's_cmp_eq_u32 s{sPL}, 0', f's_cbranch_scc1 L_ok_{lbl}'] + chk2 + [
                 f'{br_bad} L_spin_{lbl}', f's_branch L_ok_{lbl}']
        S.at(pos_load, seq('PL' + lbl, [ld[0]])); S.at(pos_load + 1, seq('PL' + lbl, [ld[1]]))
        S.at(pos_chk, seq('PL' + lbl, chk1))
        S.at(pos_chk + 2, seq('PL' + lbl, chk2 + [f'{br_bad} L_slow_{lbl}', f'L_ok_{lbl}:']))
    poll('non', None, sp(2, 0.5), sp(4, 0.5))
    S.place(signal('CQ', 0), sp(*RG), sp(*RG) + 2)
    PC = opt.get('cqpoll', (6, 0.7, 7, 0.3))
    poll('cq', 0, sp(PC[0], PC[1]), sp(PC[2], PC[3]))
    iss = {9: (7, .4, .65), 10: (7, .7, .95), 11: (8, .0, .25), 12: (8, .33, .58), 13: (8, .66, .92),
           14: (9, 0, .4), 15: (10, 0, .4), 16: (11, 0, .4), 17: (12, 0, .4), 18: (12, .55, .95)}
    for s_ in range(19, 36): iss[s_] = (s_ - 6, .05, .9)
    if opt.get('bslow', 1):
        iss.update({18: (13, .5, .95), 19: (15, .5, .95), 20: (17, .3, .8), 21: (18, .3, .8), 22: (19, .1, .6), 23: (20, .05, .45), 24: (20, .55, .95),
                    25: (21, .05, .45), 26: (22, .05, .45), 27: (22, .6, .9), 28: (23, .1, .5), 29: (23, .6, .9), 30: (24, .1, .9), 31: (25, .1, .9)})
    for s_, (s0, fa, fb) in sorted(iss.items()):
        lo = max(sp(s0, fa) + 1, bar_pos(8 if s_ in (12, 13) else (s_ - 4 if s_ < 12 else s_ - 6)) + 1)
        hi = max(lo, sp(s0, fb))
        assert hi < bar_pos(s_), s_
        S.place(dma_group(s_), lo, hi)

    def ffn_epi(stg, pairs, nts, soff, limit, dstf, flag='sc1'):
        items = []; stores = []
        for (fe, fo, imm) in pairs:
            for k_, f in enumerate((fe, fo)):
                for t in range(nts):
                    g_, u_ = acc(f, t), acc(f + 1, t)
                    dst = dstf(fe, t) + 2 * k_
                    sq = [f'v_mul_f32 v{g_+r}, v{g_+r}, v{u_+r}' for r in range(4)]
                    sq += [f'v_cvt_pk_bf16_f32 v{dst}, v{g_}, v{g_+1}', f'v_cvt_pk_bf16_f32 v{dst+1}, v{g_+2}, v{g_+3}']
                    st_ = f'buffer_store_dwordx4 {vr(dstf(fe,t),4)}, v{vL16}, {sr(sWS)}, s{soff+t} offen offset:{imm} {flag}' if k_ == 1 else None
                    items.append((done_pos(stg, f + 1, t) + 4, limit(fe), sq, st_))
        cur = -1
        for lo, hi, sq, st_ in items:
            lo = max(lo, cur)
            if lo >= NP - 1:
                S.at(NP - 1, sq); cur = NP - 1
            else:
                cur = S.place(sq, lo, max(lo, min(hi, lo + 4)))
                assert cur <= hi or hi >= NP - 1, (stg, cur, hi)
            if st_: stores.append((cur, st_))
        return stores
    def pace(stores, lo, hi):
        n = len(stores)
        for k, (e, st_) in enumerate(stores):
            g = min(NP - 1, max(e + (1 if e < NP - 1 else 0), lo + (k * (hi - lo)) // max(1, n - 1)))
            S.place([st_], g, min(NP - 1, g + 1))
    stA = ffn_epi(8, [(0, 2, 0), (4, 6, 1024)], 4, sH, lambda fe: (first_pos(9, 0, 0) - 2) if fe == 0 else sp(10, 0.5),
                  lambda fe, t: TMP + (fe // 4) * 16 + 4 * t)
    pace(stA, sp(8, 0.7), sp(16, 0.5))

    vPV = acc(6, 0)
    sU, sKB, sCG, sD0, sD1, sLB, sTY = [sPT + k for k in range(7)]
    pt = [f's_lshl_b32 s{sU}, s2, 2', f's_add_u32 s{sU}, s{sU}, s{sW}',
          f'v_lshrrev_b32 v{vS}, 7, v{vL16}',
          f'v_lshrrev_b32 v{vS+1}, 1, v{vS}', f'v_lshlrev_b32 v{vS+1}, 5, v{vS+1}',
          f'v_and_b32 v{vS+2}, 0x70, v{vL16}', f'v_xor_b32 v{vS+1}, v{vS+1}, v{vS+2}',
          f'v_mul_u32_u24 v{vPV}, 1152, v{vS}', f'v_add_u32 v{vPV}, v{vPV}, v{vS+1}',
          f'v_lshrrev_b32 v{vS+1}, 2, v{vS}', f'v_mul_u32_u24 v{vS+1}, 68, v{vS+1}', f'v_and_b32 v{vS}, 2, v{vS}',
          f'v_lshl_add_u32 v{vS+1}, v{vS}, 3, v{vS+1}', f'v_mul_u32_u24 v{vPV+2}, 1152, v{vS+1}',
          f's_lshr_b32 s{sLB}, s{sW}, 1', f's_lshl_b32 s{sLB}, s{sLB}, 13', f's_and_b32 s{sKB}, s{sW}, 1', f's_lshl_b32 s{sKB}, s{sKB}, 11',
          f's_add_u32 s{sLB}, s{sLB}, s{sKB}', f's_add_u32 s{sLB}, s{sLB}, {LDS_SCR}']
    def pt_idx(dst):
        return [f's_mul_hi_u32 s{sKB}, s{sU}, {(2**32 + 8)//9}', f's_mul_i32 s{sCG}, s{sKB}, 9', f's_sub_u32 s{sCG}, s{sU}, s{sCG}',
                f's_lshl_b32 s{dst}, s{sU}, 12', f's_add_u32 s{dst}, s{dst}, {WP_OFF}', f's_lshl_b32 s{sCG}, s{sCG}, 7']
    pt += pt_idx(sD0) + srd(sA, pWD, 4608 * 1152)
    pt += [f's_mul_i32 s{sKB}, s{sKB}, {32*1152}', f's_add_u32 s{sKB}, s{sKB}, s{sCG}']
    pt_dma0 = []
    for qh in (0, 1):
        pt_dma0.append([f's_add_u32 m0, s{sLB}, {qh*4096}', f's_add_u32 s{sCG}, s{sKB}, {8*qh*1152}',
                        I(f'buffer_load_dwordx4 v{vPV}, {sr(sA)}, s{sCG} offen lds', 'PT0'),
                        f's_add_u32 s{sCG}, s{sKB}, {(16+8*qh)*1152 - 1024}',
                        I(f'buffer_load_dwordx4 v{vPV}, {sr(sA)}, s{sCG} offen offset:1024 lds', 'PT0')])
    sHS, sQS = sO0, sO1
    pt1 = [f's_add_u32 s{sU}, s{sU}, 1024'] + pt_idx(sD1)
    pt1 += [f's_mov_b32 s{sB+2}, {4608*1152}', f's_mov_b32 s{sB+3}, 0x00020000',
            [f's_cmp_ge_u32 s{sU}, 1458', f's_cselect_b32 s{sD1}, {HUGE}, s{sD1}', f's_cselect_b32 s{sCG}, {HUGE}, s{sCG}'],
            f's_lshl_b32 s{sU}, s{sKB}, 5', f's_mul_i32 s{sTY}, s{sKB}, 36', f's_sub_u32 s{sTY}, s{sTY}, {144*36}',
            [f's_cmp_ge_u32 s{sKB}, 144', f's_cselect_b32 s{sB}, s{pWO}, s{pWD}', f's_cselect_b32 s{sB+1}, s{pWO+1}, s{pWD+1}',
             f's_cselect_b32 s{sB+2}, {576*1152}, s{sB+2}', f's_cselect_b32 s{sU}, s{sTY}, s{sU}'],
            f's_mul_i32 s{sTY}, s{sKB}, 288', f's_sub_u32 s{sTY}, s{sTY}, {160*288 - 16}',
            [f's_cmp_ge_u32 s{sKB}, 160', f's_cselect_b32 s{sU}, s{sTY}, s{sU}', f's_cselect_b32 s{sTY}, 1, 0'],
            f's_mul_i32 s{sU}, s{sU}, 1152', f's_add_u32 s{sU}, s{sU}, s{sCG}',
            f'v_mul_u32_u24 v{vPV+1}, s{sTY}, v{vPV+2}', f'v_add_u32 v{vPV+1}, v{vPV+1}, v{vPV}',
            f's_mov_b32 s{sCG}, {16*1152 - 1024}',
            [f's_cmp_ge_u32 s{sKB}, 144', f's_cselect_b32 s{sCG}, {18*1152 - 1024}, s{sCG}'],
            [f's_cmp_ge_u32 s{sKB}, 160', f's_cselect_b32 s{sCG}, {36*1152 - 1024}, s{sCG}'],
            f's_mul_i32 s{sTY}, s{sTY}, {136*1152}', f's_add_u32 s{sTY}, s{sTY}, {8*1152}']
    pt_dma1 = []
    for qh in (0, 1):
        g = [f's_add_u32 m0, s{sLB}, {16384 + qh*4096}']
        if qh: g += [f's_add_u32 s{sU}, s{sU}, s{sTY}']
        g += [f's_add_u32 s{sKB}, s{sU}, s{sCG}',
              I(f'buffer_load_dwordx4 v{vPV+1}, {sr(sB)}, s{sU} offen lds', 'PT1'),
              I(f'buffer_load_dwordx4 v{vPV+1}, {sr(sB)}, s{sKB} offen offset:1024 lds', 'PT1')]
        pt_dma1.append(g)
    S.place(seq('PT', pt), sp(10, 0.55), sp(11, 0.4))
    S.at(sp(11, 0.5), seq('PT', pt_dma0[0])); S.at(sp(12, 0.5), seq('PT', pt_dma0[1]))
    S.place(seq('PT', pt1), sp(12, 0.55), sp(14, 0.0))
    S.at(sp(14, 0.3), seq('PT', pt_dma1[0])); S.at(sp(16, 0.3), seq('PT', pt_dma1[1]))
    def pt_frag(un, f):
        b = SP + 4 * (f % 2)
        o = [f'v_and_b32 v{b+2}, 0xffff, v{vAF+f}', f'v_add_u32 v{b+2}, s{sLB}, v{b+2}']
        o += [[need(f'PT{un}'), f'ds_read_b64_tr_b16 {vr(b,2)}, v{b+2} offset:{un*16384}'], f'ds_read_b64_tr_b16 {vr(b+2,2)}, v{b+2} offset:{un*16384 + 1024}']
        return seq('PT', o), seq('PT', [f'buffer_store_dwordx4 {vr(b,4)}, v{vL16}, {sr(sWS)}, s{(sD0, sD1)[un]} offen offset:{f*1024} sc1'])
    for un, (pa, pb) in enumerate(((sp(18, 0.1), sp(20, 0.55)), (sp(23, 0.0), sp(25, 0.6)))):
        for f in range(4):
            g = pa + (f * (pb - pa)) // 4
            rd_, st_ = pt_frag(un, f)
            c = S.place(rd_, g, g + 6)
            S.place(st_, c + 10, c + 12)
    sF = 83
    fill = [f'v_mov_b32 v{SP+k}, -1' for k in range(4)]
    fill += [f's_lshl_b32 s{sF}, s2, 2', f's_add_u32 s{sF}, s{sF}, s{sW}', f's_mul_i32 s{sF}, s{sF}, 6912', f's_add_u32 s{sF}, s{sF}, {X_OFF}']
    fst = []
    for k in range(7):
        fst.append(([f's_add_u32 s{sF}, s{sF}, {4096 - 256}'] if k == 4 else []) +
                   [f'buffer_store_dwordx4 {vr(SP,4)}, v{vL16}, {sr(sWS)}, s{sF} offen offset:{(k%4)*1024} sc1'])
    FS = opt.get('fill', (4, 0.0, 8, 0.5))
    pro_fill = []
    if FS == 'pro':
        pro_fill = seq('FILL', fill) + seq('FILL', fst)
    else:
        c = S.place(seq('FILL', fill), sp(FS[0], FS[1]) - 12, sp(FS[0], FS[1]))
        S.place(seq('FILL', fst), c + 1, sp(FS[2], FS[3]))

    T0, T1, T3A, T3B = TMP, TMP + 8, TMP + 16, TMP + 24
    cur = -1
    for f in range(4):
        for t in range(4):
            d = {0: T0 + 2 * t, 1: T1 + 2 * t, 2: PQ + 4 * t, 3: T3A + 2 * t}[f]
            a = acc(f, t)
            lo = max(cur, done_pos(17, f, t) + 4)
            cur = S.place([f'v_cvt_pk_bf16_f32 v{d}, v{a}, v{a+1}', f'v_cvt_pk_bf16_f32 v{d+1}, v{a+2}, v{a+3}'], lo, lo + 2)
    assert cur < first_pos(18, 0, 0) - 2
    p_att = cur + 1
    def phi(r, mask=None):
        a, b, c, d = vS, vS + 1, vS + 2, vS + 3
        o = [f'v_lshlrev_b32 v{a}, 16, v{r}', f'v_and_b32 v{b}, 0xffff0000, v{r}',
             f'v_mul_f32 v{c}, {LOG2E}, v{a}', f'v_mul_f32 v{d}, {LOG2E}, v{b}',
             f'v_exp_f32_e64 v{c}, v{c} clamp', f'v_exp_f32_e64 v{d}, v{d} clamp',
             f'v_max_f32 v{a}, {EPS6}, v{a}', f'v_max_f32 v{b}, {EPS6}, v{b}',
             f'v_add_f32 v{a}, v{a}, v{c}', f'v_add_f32 v{b}, v{b}, v{d}']
        if mask is None:
            o += [f'v_cvt_pk_bf16_f32 v{r}, v{a}, v{b}']
        else:
            o += [f'v_cvt_pk_bf16_f32 v{a}, v{a}, v{b}', f'v_cndmask_b32 v{r}, v{r}, v{a}, {sr(mask,2)}']
        return o
    att1 = []
    for k in range(8): att1 += phi(T3A + k, mPHI)
    att1 += [f'v_mov_b32 v{vS}, 0x3f803f80'] + [f'v_cndmask_b32 v{T3B+k}, v{T3A+k}, v{vS}, {sr(mONE,2)}' for k in range(8)]
    for k in range(8): att1 += phi(T0 + k)
    KE = opt.get('kvend', (21, 0.0))
    cur = S.place(seq('ATT1', att1), p_att, sp(*KE))
    kvm = []
    for (dst, A, B) in ((SP, T0, T1), (SP + 4, T3A, T1), (T1, T0, T3B), (T1 + 4, T3A, T3B)):
        kvm += [f'{MFMA} {vr(dst,4)}, {vr(A,4)}, {vr(B,4)}, 0', f'{MFMA} {vr(dst,4)}, {vr(A+4,4)}, {vr(B+4,4)}, {vr(dst,4)}']
    a_kvw = vS
    assert cur >= bar_pos(21)
    kvw = [f'v_add_u32 v{a_kvw}, s{sW4K}, v{vL16}', f's_lshr_b32 s{sXo}, s{sW4K}, 2', f's_add_u32 s{sXo}, s{sXo}, {LDS_KV}',
           f'v_add_u32 v{a_kvw+1}, s{sXo}, v{vL16}', f'v_add_u32 v{a_kvw}, {LDS_KV}, v{a_kvw}']
    cur = S.place(seq('KV', kvm), cur + 1, cur + 9)
    cur = S.place(seq('KV', kvw), cur + 1, cur + 3)
    t3 = [f'v_and_b32 v{vS+2}, 0xf0, v{vL16}', f'v_lshlrev_b32 v{vS+2}, 1, v{vS+2}', f'v_lshrrev_b32 v{vS+3}, 8, v{vL16}',
          f'v_lshl_add_u32 v{vS+2}, v{vS+3}, 3, v{vS+2}', f'v_add_u32 v{vS+2}, s{sXo}, v{vS+2}']
    t3 += [f'ds_write_b64 v{vS+2}, {vr(T3A+2*t,2)} offset:{(t>>1)*4096 + (t&1)*512}' for t in range(4)]
    t3 += [f'v_bfe_u32 v{vS+3}, v{vL16}, 6, 2', f'v_lshlrev_b32 v{vS+3}, 5, v{vS+3}', f'v_bfe_u32 v{vS+2}, v{vL16}, 4, 2',
           f'v_lshl_add_u32 v{vS+3}, v{vS+2}, 3, v{vS+3}', f'v_add_u32 v{vS+3}, s{sXo}, v{vS+3}']
    t3 += [f'ds_read_b64_tr_b16 {vr(PQ+4*t+2,2)}, v{vS+3} offset:{(t>>1)*4096 + (t&1)*512 + 320}' for t in range(4)]
    cur = S.place(seq('KV', t3), cur + 1, cur + 12)
    wr = [I(f'ds_write_b128 v{a_kvw+1}, {vr(src,4)} offset:{n_*4096}', 'KVW') for n_, src in enumerate((SP, SP + 4, T1, T1 + 4))]
    cur = S.place(seq('KV', wr), cur + 1, cur + 4)
    KB = opt.get('kvbar', 22)
    assert cur < bar_pos(KB) - 4, (cur, bar_pos(KB))
    pub = [f'ds_read_b128 {vr(TMP+4*k,4)}, v{a_kvw} offset:{k*1024}' for k in range(4)]
    pub += [f's_lshl_b32 s{sXo}, s{sJ}, 2', f's_add_u32 s{sXo}, s{sXo}, s{sW}', f's_lshl_b32 s{sXo}, s{sXo}, 3', f's_add_u32 s{sXo}, s{sXo}, s{sI}',
            f's_lshl_b32 s{sXo}, s{sXo}, 10', f's_add_u32 s{sXo}, s{sXo}, {KV_OFF}']
    pub += [f'v_add_f32 v{TMP+r}, v{TMP+r}, v{TMP+4+r}' for r in range(4)]
    pub += [f'v_add_f32 v{TMP+8+r}, v{TMP+8+r}, v{TMP+12+r}' for r in range(4)]
    pub += [f'v_add_f32 v{TMP+r}, v{TMP+r}, v{TMP+8+r}' for r in range(4)]
    pub += [I(f'buffer_store_dwordx4 {vr(TMP,4)}, v{vL16}, {sr(sWS)}, s{sXo} offen sc1', 'KVP')]
    lo = max(cur + 1, bar_pos(KB) + 1)
    cur = S.place(seq('KV', pub), lo, lo + 16)
    p_pub = cur
    att2 = []
    for t in range(4): att2 += phi(PQ + 4 * t) + phi(PQ + 4 * t + 1)
    for t in range(4):
        g_ = PQ + 4 * t + 3
        att2 += [f'v_cndmask_b32 v{g_-1}, 0, v{g_-1}, {sr(mQ0,2)}', f'v_lshlrev_b32 v{vS}, 16, v{g_}', f'v_mul_f32 v{vS}, {NLOG2E}, v{vS}',
                 f'v_exp_f32 v{vS}, v{vS}', f'v_add_f32 v{vS}, 1.0, v{vS}', f'v_rcp_f32 v{vS}, v{vS}',
                 f'v_cvt_pk_bf16_f32 v{vS}, v{vS}, v{vS}', f'v_and_b32 v{g_}, 0xffff0000, v{vS}', f'v_sub_f32 v{vS+1}, 1.0, v{g_}',
                 f'v_bfe_u32 v{vS+2}, v{vL16}, 4, 4', f'v_lshlrev_b32 v{vS+2}, 2, v{vS+2}',
                 f'buffer_store_dword v{vS+1}, v{vS+2}, {sr(sWS)}, s{sG} offen offset:{t*64}']
    SG = opt.get('kvsig', (24, 0.1))
    S.place(signal('KVP', 1), sp(*SG), sp(*SG) + 2)
    cur = S.place(seq('ATT2', att2), cur + 1, sp(25, 0.4))
    PK = opt.get('kvpoll', (25, 0.6, 26, 0.0))
    poll('kv', 1, sp(PK[0], PK[1]), sp(PK[2], PK[3]) + 1)
    p_g = sp(PK[2], PK[3]) + 4
    gat = [f's_lshl_b32 s{sXo}, s{sJ}, 2', f's_add_u32 s{sXo}, s{sXo}, s{sW}', f's_lshl_b32 s{sXo}, s{sXo}, 13', f's_add_u32 s{sXo}, s{sXo}, {KV_OFF}']
    for k in range(8):
        if k == 4: gat.append(f's_add_u32 s{sXo}, s{sXo}, 4096')
        gat.append(f'buffer_load_dwordx4 {vr(TMP+4*k,4)}, v{vL16}, {sr(sWS)}, s{sXo} offen offset:{(k%4)*1024} sc1')
    cur = S.place(seq('GAT', gat), p_g, p_g + 14)
    stB = ffn_epi(26, [(4, 6, 3072), (0, 2, 2048)], 4, sH, lambda fe: (first_pos(27, 4, 0) - 2) if fe == 4 else sp(30, 0.9),
                  lambda fe, t: (SP + 4 * t if t < 2 else acc(5, t)) if fe == 4 else acc(1, t), opt.get('bflag', 'sc1'))
    stB = [stB[2], stB[3], stB[0], stB[1]] + stB[4:]
    BP = opt.get('bpace', (26, 0.6, 34, 0.9))
    pace(stB, sp(BP[0], BP[1]), sp(BP[2], BP[3]))
    def touch_h(imm, own):
        return seq(own, [f'v_lshrrev_b32 v{vPOLL}, 8, v{vL16}', f'v_xor_b32 v{vPOLL}, s{sPAR2}, v{vPOLL}', f'v_mul_u32_u24 v{vPOLL}, {HROW//8}, v{vPOLL}',
                         f'v_and_or_b32 v{vPOLL}, v{vL16}, s{sT0F}, v{vPOLL}', f'v_lshlrev_b32 v{vPOLL}, 3, v{vPOLL}',
                         f'buffer_load_dword v{vPOLL}, v{vPOLL}, {sr(sWS)}, s{sHB} offen offset:{imm}'])
    if opt.get('touch', 0):
        S.place([f's_mov_b32 s{sT0F}, 0xf0', f's_mul_i32 s{sHB}, s{sPAR2}, {HROW}', f's_sub_u32 s{sHB}, s{sH}, s{sHB}'], sp(18, 0.5), sp(18, 0.6))
        S.place(touch_h(0, 'TA'), sp(19, 0.0), sp(19, 0.3))
        tw = [f's_lshr_b32 s{sXo}, s2, 3', f's_lshl_b32 s{sXo}, s{sXo}, 2', f's_add_u32 s{sXo}, s{sXo}, s{sW}',
              f's_and_b32 s{sPT}, s2, 3', f's_mul_i32 s{sPT+1}, s{sPT}, {32*36*1024}', f's_mul_i32 s{sPT+2}, s{sXo}, 9216',
              f's_add_u32 s{sPT+1}, s{sPT+1}, s{sPT+2}', f's_add_u32 s{sPT+1}, s{sPT+1}, {WP_OFF}',
              f'v_lshlrev_b32 v{vPOLL}, 3, v{vL16}', f'buffer_load_dword v{vS+2}, v{vPOLL}, {sr(sWS)}, s{sPT+1} offen',
              f's_mul_i32 s{sPT}, s{sPT}, {u32((4 - 32)*36*1024)}', f's_mul_i32 s{sPT+2}, s{sXo}, {u32(1152 - 9216)}', f's_add_u32 s{sPT}, s{sPT}, s{sPT+2}',
              f's_add_u32 s{sPT}, s{sPT}, {128*36*1024 - 1024}',
              f'v_mov_b32 v{vS+3}, 8192', f'v_mov_b32 v{vS+2}, s{sPT}', f'v_cmp_gt_u32 vcc, {8*128}, v{vPOLL}', f'v_cndmask_b32 v{vS+3}, v{vS+2}, v{vS+3}, vcc',
              f'v_add_u32 v{vS+2}, 588672, v{vS+2}', f'v_cmp_gt_u32 vcc, {17*128}, v{vPOLL}', f'v_cndmask_b32 v{vS+3}, v{vS+2}, v{vS+3}, vcc',
              f'v_mov_b32 v{vS+2}, {HUGE}', f'v_cmp_gt_u32 vcc, {26*128}, v{vPOLL}', f'v_cndmask_b32 v{vS+3}, v{vS+2}, v{vS+3}, vcc',
              f'v_add_u32 v{vPOLL}, v{vPOLL}, v{vS+3}', f'buffer_load_dword v{vPOLL}, v{vPOLL}, {sr(sWS)}, s{sPT+1} offen']
        TW = opt.get('tw', (26, 0.3, 26, 0.95))
        S.place(seq('TW', tw), sp(TW[0], TW[1]), sp(TW[2], TW[3]))
    sm = []
    for (a, b) in ((0, 4), (8, 12), (16, 20), (24, 28), (0, 8), (16, 24), (0, 16)):
        sm += [f'v_add_f32 v{TMP+a+r}, v{TMP+a+r}, v{TMP+b+r}' for r in range(4)]
    sm += [f's_lshr_b32 s{sXo}, s{sW4K}, 2', f's_add_u32 s{sXo}, s{sXo}, {LDS_KV}', f'v_add_u32 v{vS}, s{sXo}, v{vL16}',
           I(f'ds_write_b128 v{vS}, {vr(TMP,4)}', 'KVW2')]
    KB2 = opt.get('kvbar2', 30)
    cur = S.place(seq('FIN', sm), sp(27, 0.5), bar_pos(KB2) - 3)
    KA = TMP + 16
    fin = [f'v_add_u32 v{vS}, {LDS_KV}, v{vL16}']
    fin += [f'ds_read_b128 {vr(TMP+4*k,4)}, v{vS} offset:{k*1024}' for k in range(4)]
    fin += [f'v_mov_b32 v{KA+3}, 0', f'v_mov_b32 v{KA+7}, 0']
    for e in range(2):
        a, b = TMP + 8 * e, TMP + 8 * e + 4
        fin += [f'v_cvt_pk_bf16_f32 v{KA+4*e}, v{a}, v{a+1}', f'v_cvt_pk_bf16_f32 v{KA+4*e+1}, v{a+2}, v{a+3}',
                f'v_cvt_pk_bf16_f32 v{KA+4*e+2}, v{b+2}, v{b+3}', f'v_cndmask_b32 v{KA+4*e+2}, 0, v{KA+4*e+2}, {sr(mQ0,2)}']
    N0 = lambda t: acc(4 + t, 2)
    N1 = lambda t: acc(4 + t, 3)
    for t in range(4):
        fin += [f'{MFMA} {vr(N1(t),4)}, {vr(KA+4,4)}, {vr(PQ+4*t,4)}, 0', f'{MFMA} {vr(N0(t),4)}, {vr(KA,4)}, {vr(PQ+4*t,4)}, 0']
    vO2 = TMP
    fin += [f's_lshr_b32 s{sPT}, s{sJ}, 4', f's_lshr_b32 s{sPT+1}, s{sJ}, 1', f's_sub_u32 s{sPT}, s{sPT}, s{sPT+1}', f's_add_u32 s{sPT}, s{sPT}, 16',
            f's_lshl_b32 s{sPT}, s{sPT}, 10', f's_bfe_u32 s{sPT+1}, s{sJ}, 0x20002', f's_lshl_b32 s{sPT+1}, s{sPT+1}, 8', f's_add_u32 s{sPT}, s{sPT}, s{sPT+1}',
            f's_and_b32 s{sPT+1}, s{sJ}, 3', f's_lshl_b32 s{sPT+1}, s{sPT+1}, 2', f's_add_u32 s{sPT}, s{sPT}, s{sPT+1}',
            f's_lshl_b32 s{sPT+1}, s{sPAR2}, 2', f's_sub_u32 s{sPT}, s{sPT}, s{sPT+1}', f's_sub_u32 s{sPT}, s{sPT}, 256',
            f'v_add_u32 v{vO2}, s{sPT}, v{vL16}',
            f's_mov_b32 s{mONE}, 0xffff0000', f's_mov_b32 s{mONE+1}, 0', f'v_mov_b32 v{vS}, {HUGE}',
            f'v_cndmask_b32 v{vO2}, v{vS}, v{vO2}, {sr(mONE,2)}']
    for t in range(4):
        n0, n1 = N0(t), N1(t)
        fin += [f'v_add_f32 v{n1}, {EPS6}, v{n1}', f'v_rcp_f32 v{n1}, v{n1}', f'v_mul_f32 v{n1}, v{n1}, v{PQ+4*t+3}']
        fin += [f'v_mul_f32 v{n0+r}, v{n0+r}, v{n1}' for r in range(4)]
        fin += [f'v_mul_f32 v{n1+2}, v{n1+2}, v{n1}', f'v_mul_f32 v{n1+3}, v{n1+3}, v{n1}',
                f'v_cvt_pk_bf16_f32 v{n0}, v{n0}, v{n0+1}', f'v_cvt_pk_bf16_f32 v{n0+1}, v{n0+2}, v{n0+3}', f'v_cvt_pk_bf16_f32 v{n1+2}, v{n1+2}, v{n1+3}',
                f'buffer_store_dwordx2 {vr(n0,2)}, v{vL16}, {sr(sWS)}, s{sOo+t} offen', f'buffer_store_dword v{n1+2}, v{vO2}, {sr(sWS)}, s{sOo+t} offen']
    S.place(seq('FIN', fin), bar_pos(KB2) + 1, NP - 2)
    stC = ffn_epi(35, [(4, 6, 0)], 2, sHC, lambda fe: NP, lambda fe, t: acc(5, t), opt.get('cflag', ''))
    if opt.get('touch', 0): S.place(touch_h(2048, 'TB'), sp(35, 0.0), NP - 2)
    for e, st_ in stC: S.at(NP - 1, st_)

    if diag:
        for k in range(1, 36): S.at(sp(k, 0), st.take(f's{k}'))

    vL = 12
    P = []
    P += ['s_cmp_ge_u32 s2, 256', 's_cbranch_scc1 L_k1_end']
    P += st.take('start')
    P += ['s_load_dwordx16 s[32:47], s[0:1], 0', 's_load_dwordx4 s[48:51], s[0:1], 72', f's_memrealtime s[{sNON}:{sNON+1}]',
          'v_lshrrev_b32 v1, 6, v0', f'v_and_b32 v{vL}, 63, v0', f'v_readfirstlane_b32 s{sW}, v1']
    if opt.get('cpf', 1):
        P += [f's_getpc_b64 {sr(sA,2)}', 'L_k1_pc:', f's_mov_b32 s{sA+2}, L_code_end-L_k1_pc', f's_mov_b32 s{sA+3}, 0x00020000',
              f's_lshr_b32 s3, s2, 3', 's_lshl_b32 s3, s3, 11', 'v_and_b32 v13, 0xc3, v0', 'v_lshrrev_b32 v14, 4, v13', 'v_or_b32 v13, v13, v14',
              'v_and_b32 v13, 15, v13', 'v_lshlrev_b32 v13, 7, v13', f'buffer_load_dword v{TMP+24}, v13, {sr(sA)}, s3 offen']
    P += [
          's_and_b32 s3, s2, 3', f's_bfe_u32 s{sPAR2}, s2, 0x30003', f's_lshl_b32 s{sJ}, s3, 3', f's_add_u32 s{sJ}, s{sJ}, s{sPAR2}',
          f's_and_b32 s{sI}, s2, 4', f's_lshr_b32 s{sO1}, s2, 6', f's_add_u32 s{sI}, s{sI}, s{sO1}']
    rm = opt.get('rot', (0, 0, 0, 0))
    P += [f's_mul_i32 s{sP}, s{sO1}, {rm[0]}', f's_mul_i32 s{sO0}, s{sPAR2}, {rm[1]}', f's_add_u32 s{sP}, s{sP}, s{sO0}',
          f's_mul_i32 s{sO0}, s3, {rm[2]}', f's_add_u32 s{sP}, s{sP}, s{sO0}',
          f's_bfe_u32 s{sO0}, s2, 0x10002', f's_mul_i32 s{sO0}, s{sO0}, {rm[3]}', f's_add_u32 s{sP}, s{sP}, s{sO0}',
          f's_mul_i32 s{sO0}, s{sP}, 7282', f's_lshr_b32 s{sO0}, s{sO0}, 16', f's_mul_i32 s{sO0}, s{sO0}, 9', f's_sub_u32 s{sP}, s{sP}, s{sO0}']
    def nextp(k): return [f's_add_u32 s{sP+k}, s{sP+k-1}, 1', f's_cmp_eq_u32 s{sP+k}, 9', f's_cselect_b32 s{sP+k}, 0, s{sP+k}']
    P += [f's_and_b32 s{sPAR2}, s{sPAR2}, 1', f's_lshl_b32 s{sPAR2}, s{sPAR2}, 1', f's_mov_b32 s{sXo2}, {8*1152 - 1024}',
          f'v_lshlrev_b32 v{vL16}, 4, v{vL}',
          f'v_lshrrev_b32 v13, 3, v{vL}', 'v_lshrrev_b32 v14, 2, v13', 'v_and_b32 v15, 3, v13', 'v_lshl_add_u32 v14, v14, 3, v15',
          'v_lshrrev_b32 v13, 1, v13', 'v_lshlrev_b32 v13, 5, v13', f'v_and_b32 v15, 0x70, v{vL16}', 'v_xor_b32 v13, v13, v15',
          f'v_mul_u32_u24 v{vAB}, 9216, v14', f'v_add_u32 v{vAB}, v{vAB}, v13', f'v_lshl_add_u32 v{vCQ}, v14, 7, v13',
          f'v_lshrrev_b32 v13, 3, v{vL}', 'v_mul_u32_u24 v13, 1152, v13', f'v_and_b32 v14, 0x70, v{vL16}', f'v_and_b32 v15, 0x30, v{vL}',
          'v_xor_b32 v14, v14, v15', f'v_add_u32 v{vXV}, v13, v14', 'v_xor_b32 v14, 64, v14', f'v_add3_u32 v{vXV+1}, v13, v14, s{sXo2}',
          f's_lshl_b32 s{sW4K}, s{sW}, 12',
          f's_mul_i32 s{sAB}, s{sW}, {16*9216}', f's_lshl_b32 s{sO0}, s{sJ}, 8', f's_add_u32 s{sAB}, s{sAB}, s{sO0}',
          f's_lshl_b32 s{sO0}, s{sI}, 2', f's_add_u32 s{sO0}, s{sO0}, s{sW}', f's_lshl_b32 s{sO0}, s{sO0}, 2']
    for t in range(4):
        P += [f's_xor_b32 s{sH+t}, s{sPAR2}, {t}', f's_add_u32 s{sH+t}, s{sH+t}, s{sO0}',
              f's_mul_i32 s{sXT+t}, s{sH+t}, 18432'] + ([f's_sub_u32 s{sXT+t}, s{sXT+t}, 2048'] if t % 2 else [])
    P += [f's_lshl_b32 s{sXB}, s{sW}, 13', f's_add_u32 s{sXB}, s{sXB}, 98304']
    P += ['s_waitcnt lgkmcnt(0)']
    P += srd(sWG, pWG, 576 * 9216)
    P += [f's_sub_u32 s{sWU}, s{pWU}, 2048', f's_subb_u32 s{sWU+1}, s{pWU+1}, 0', f's_mov_b32 s{sWU+2}, {576*9216+2048}', f's_mov_b32 s{sWU+3}, 0x00020000']
    P += srd(sX, pX, 2048 * 1152)
    P += dma_group(0) + x_group(0)
    P += srd(sA, pQKV, 576 * 3456) + srd(sB, pGW, 1152) + srd(sWS, pWS, WS_BYTES) + srd(sDBG, pDBG, 256)
    P += [f's_or_b32 s{sNON}, s{sNON}, 1', f'v_mov_b32 v13, s{sNON}', f's_or_b32 s{sO0}, s2, s{sW}', f's_cmp_eq_u32 s{sO0}, 0', f's_cselect_b32 s{sO0}, 0, {HUGE}',
          f'v_lshlrev_b32 v14, 8, v{vL}', f'buffer_store_dword v13, v14, {sr(sDBG)}, s{sO0} offen sc1']
    for k in range(1, 9): P += nextp(k)
    P += [f's_mul_i32 s{sCQ}, s{sJ}, 73728', f's_add_u32 s{sCQ}, s{sCQ}, {CQ_OFF}',
          f's_lshl_b32 s{sFL}, s{sJ}, 8', f's_add_u32 s{sFL}, s{sFL}, {FL_OFF}']
    P += [
          f's_lshl_b32 s{sO0}, s{sW}, 11', f's_add_u32 s{sCQ}, s{sCQ}, s{sO0}',
          f's_mul_i32 s{sC}, s{sW}, {16*9216}', f's_lshr_b32 s{sO0}, s{sJ}, 1', f's_lshl_b32 s{sO1}, s{sO0}, 6', f's_add_u32 s{sC}, s{sC}, s{sO1}',
          f's_add_u32 s{sC}, s{sC}, 8192',
          f's_add_u32 s{sO0}, s{sO0}, 128', f's_lshl_b32 s{sO0}, s{sO0}, 10']
    for t in range(4):
        P += [f's_mul_i32 s{sH+t}, s{sH+t}, {HROW}']
        if t < 2: P += [f's_add_u32 s{sHC+t}, s{sH+t}, s{sO0}']
    P += [f's_add_u32 s{sO1}, s{sO0}, 16384', f's_lshl_b32 s{sO0}, s{sPAR2}, 2', f's_add_u32 s{sO1}, s{sO1}, s{sO0}', f's_lshl_b32 s{sO0}, s{sJ}, 12']
    for t in range(4):
        P += [f's_add_u32 s{sOo+t}, s{sH+t}, s{sO1}', f's_add_u32 s{sH+t}, s{sH+t}, s{sO0}']
    P += [f's_lshl_b32 s{sG}, s{sI}, 2', f's_add_u32 s{sG}, s{sG}, s{sW}', f's_lshl_b32 s{sG}, s{sG}, 8', f's_add_u32 s{sG}, s{sG}, {G_OFF}',
          f's_cmp_eq_u32 s{sJ}, 0', f's_cselect_b32 s{sG}, s{sG}, {HUGE}',
          f's_mov_b32 s{mG15}, 0x80008000', f's_mov_b32 s{mG15+1}, 0x80008000', f's_mov_b32 s{mPHI}, 0x0f0f0f0f', f's_mov_b32 s{mPHI+1}, 0x0f0f0f0f',
          f's_mov_b32 s{mONE}, 0x11111111', f's_mov_b32 s{mONE+1}, 0x11111111', f's_mov_b32 s{mQ0}, 0xffff', f's_mov_b32 s{mQ0+1}, 0',
          f'v_lshrrev_b32 v13, 5, v{vL}', 'v_lshlrev_b32 v13, 12, v13', f'v_and_b32 v14, 3, v{vL}', 'v_lshl_add_u32 v13, v14, 3, v13',
          f'v_bfe_u32 v14, v{vL}, 2, 3', 'v_lshl_add_u32 v15, v14, 7, v13', 'v_lshrrev_b32 v14, 1, v14', f'v_lshl_add_u32 v{vAF}, v14, 5, v15',
          f'v_xor_b32 v{vAF+1}, 32, v{vAF}', f'v_xor_b32 v{vAF+2}, 64, v{vAF}', f'v_xor_b32 v{vAF+3}, 0x60, v{vAF}',
          f'v_bfe_u32 v14, v{vL}, 4, 1', 'v_mul_u32_u24 v14, 544, v14', f'v_bfe_u32 v15, v{vL}, 2, 2', 'v_lshl_add_u32 v14, v15, 6, v14',
          f'v_add_u32 v{vAC}, v13, v14', f'v_xor_b32 v{vAC}, {(slot(27)//4) * 0x10000}, v{vAC}', f'v_xor_b32 v{vAC+1}, 32, v{vAC}',
          f'v_and_b32 v13, 15, v{vL}', 'v_lshrrev_b32 v14, 1, v13', f'v_lshrrev_b32 v15, 4, v{vL}', 'v_xor_b32 v14, v14, v15',
          'v_lshlrev_b32 v14, 4, v14', 'v_lshl_add_u32 v14, v13, 7, v14', f'v_add_u32 v{vXA}, s{sXB}, v14', f'v_xor_b32 v{vXA+1}, 64, v{vXA}',
          f'v_lshrrev_b32 v13, 2, v{vL}', 'v_mul_u32_u24 v13, 9216, v13', f'v_and_b32 v14, 0x30, v{vL16}', f'v_lshrrev_b32 v15, 5, v{vL}',
          'v_lshlrev_b32 v15, 5, v15', 'v_xor_b32 v14, v14, v15', f'v_add_u32 v{vC}, v13, v14',
          f's_lshl_b32 s{sO0}, s{sI}, 2', f's_add_u32 s{sO0}, s{sO0}, s{sW}', f's_lshl_b32 s{sO0}, s{sO0}, 2', f'v_mov_b32 v13, s{sO0}', f'v_mov_b32 v14, {HUGE}', f'v_cmp_eq_u32 vcc, 0, v{vL}',
          f'v_cndmask_b32 v{vDB}, v14, v13, vcc']
    if opt.get('pre', 1):
        P += [f'v_mov_b32 v13, {HUGE}', f'v_cmp_gt_u32 vcc, 18, v{vL}', f'v_lshlrev_b32 v14, 7, v{vL}', f'v_mul_u32_u24 v15, 9216, v{vL}',
              'v_cndmask_b32 v14, v13, v14, vcc', 'v_cndmask_b32 v15, v13, v15, vcc',
              f's_mul_i32 s{sO0}, s{sI}, 72', f's_mul_i32 s{sO1}, s{sW}, 18', f's_add_u32 s{sO0}, s{sO0}, s{sO1}', f's_mul_i32 s{sO0}, s{sO0}, 9216',
              f's_lshl_b32 s{sO1}, s{sJ}, 8', f's_add_u32 s{sO0}, s{sO0}, s{sO1}',
              f'buffer_load_dword v{TMP+20}, v15, {sr(sWG)}, s{sO0} offen', f'buffer_load_dword v{TMP+21}, v15, {sr(sWU)}, s{sO0} offen offset:2048',
              f's_lshl_b32 s{sO0}, s2, 2', f's_add_u32 s{sO0}, s{sO0}, s{sW}', f's_mul_i32 s{sO1}, s{sO0}, {18*128}',
              f'buffer_load_dword v{TMP+22}, v14, {sr(sX)}, s{sO1} offen', f's_lshl_b32 s{sO1}, s{sO0}, 11',
              f'buffer_load_dword v{TMP+23}, v14, {sr(sA)}, s{sO1} offen']
    P += pro_fill
    P += x_reads(0) + pro_tail
    P += st.take('first')
    P = mk(P)
    body = P + S.linear()
    E = st.take('end') + st.dump(pWS, sW, 0, 12) + ['L_k1_end:', 's_endpgm']
    res = st.expand(finalize(body + mk(E), 'k1'))
    n0 = len(P)
    main = [x for x in res]
    idx = next(k for k, x in enumerate(res) if x.kind == 'mfma')
    check_owner(res, TEMPS, idx)
    ex, hist, worst = gap_report(res)
    print('[k1] est. exposed filler cycles', ex, hist, worst[:20])
    return kernel_text(name, text(res) + text(mk(slow)), 512, 256), st.names


def gen_k2(name, opt):
    diag = opt.get('diag', False)
    st = Stamps(diag, 92, 14)
    sWS, sWP, sOUT = 4, 8, 12
    pOUT, pWS = 16, 20
    sW, sKQ, sR, sCc, sPAR, sTK = 24, 25, 26, 27, 28, 29
    sHt, sOt, sOt4 = 30, 32, 34
    sWB, sD0, sD1, sSO, sM0 = 36, 37, 38, 39, 40
    sT0, sT1, sT2 = 41, 42, 43
    sXS, sXR, sOs = 44, 47, 48
    mPAR = 54
    sWO, sGo = 56, 58
    sJW, sJH = 60, 61
    TEMPS = {'m0', 'scc', f's{sSO}'}
    vL16, vO, vLB, vG, vS, vL4, vOUT = 0, 1, 2, 6, 8, 12, 13
    WF = 16; NWS = 4
    ACC = 48
    HD = opt.get('hd', 5)
    HF = 120
    XR = HF
    def acc(t, f): return ACC + (t * 9 + f) * 4
    S = Sched()
    NPAIR = 21
    units = []; pair_pos = []
    def hreg(P_, t, kk): return vr(HF + 16 * (P_ % HD) + 8 * t + 4 * kk, 4)
    for P_ in range(NPAIR):
        pair_pos.append(S.n)
        for f in range(9):
            u = len(units); wb = WF + 8 * (u % NWS); p0 = S.n
            for t in range(2):
                kks = ((0, 1) if t == 0 else (1, 0)) if P_ < 20 else (0,)
                for n_, kk in enumerate(kks):
                    a = vr(acc(t, f), 4)
                    c = '0' if (P_ == 0 and n_ == 0) else a
                    S.mfma(f'{MFMA} {a}, {vr(wb+4*kk,4)}, {hreg(P_, t, kk)}, {c}')
            units.append((P_, f, p0, S.n - 1))
    pair_pos.append(S.n)
    NP = S.n
    def pp(P_, frac=0.0):
        a, b = pair_pos[P_], pair_pos[P_ + 1]
        return a + int((b - a) * frac) - 1
    def unit_reads(u):
        P_, f, p0, p1 = units[u]
        stg = P_ // 2; wb = WF + 8 * (u % NWS)
        return [I(f'ds_read_b128 {vr(wb+4*kk,4)}, v{vLB + stg % 4} offset:{((P_%2)*2+kk)*9216 + f*1024}', f'U{u}') for kk in ((0, 1) if P_ < 20 else (0,))]
    LA = NWS - 1
    pro_tail = []
    barp = {}
    for u in range(len(units)):
        P_, f = units[u][:2]
        pre = []
        if P_ % 2 == 0 and f == 0: pre = [need(f'W{P_//2}'), 's_barrier']
        if u < LA:
            pro_tail += pre + unit_reads(u); barp[0] = -1
        else:
            _, _, p0, p1 = units[u - LA]
            if pre:
                S.at(p0 - 1, pre); barp[P_ // 2] = p0 - 1
            S.place(unit_reads(u), p0, p1)
        if u > 0: S.tail_at(units[u][2] - 1, need(f'U{u}'))
    def dma_group(stg):
        tag = f'W{stg}'
        o = []
        if stg <= 9:
            for n_ in range(9):
                g = []
                if n_ % 4 == 0: g.append(f's_add_u32 m0, s{sM0}, {(stg % 4)*36864 + (n_//4)*4096}')
                g.append(f's_mov_b32 s{sSO}, s{sWB}' if n_ == 0 else f's_add_u32 s{sSO}, s{sSO}, s{sD1 if n_ % 4 == 0 else sD0}')
                g.append(I(f'buffer_load_dwordx4 v{vL16}, {sr(sWP)}, s{sSO} offen offset:{(n_%4)*1024} lds', tag))
                o.append(g)
            if stg < 7: o.append(f's_add_u32 s{sWB}, s{sWB}, {4*36*1024}')
            if stg == 7: o.append(f's_add_u32 s{sWB}, s{sWB}, s{sJW}')
            if stg == 8: o.append(f's_add_u32 s{sWB}, s{sWB}, {16*36*1024}')
        else:
            for n_ in range(3):
                g = []
                if n_ == 0: g += [f's_mul_i32 s{sSO}, s{sW}, 3072', f's_add_u32 m0, s{sSO}, {(stg % 4)*36864}', f's_mov_b32 s{sSO}, s{sWO+1}']
                else: g.append(f's_add_u32 s{sSO}, s{sSO}, s{sD0}')
                g.append(I(f'buffer_load_dwordx4 v{vL16}, {sr(sWP)}, s{sSO} offen offset:{n_*1024} lds', tag))
                o.append(g)
        return seq(tag, o)
    def h_group(P_):
        o = []
        for t in range(2):
            for kk in ((0, 1) if P_ < 20 else (0,)):
                n_ = 2 * P_ + kk
                o.append(f'buffer_load_dwordx4 {hreg(P_, t, kk)}, v{vL16}, {sr(sWS)}, s{sHt+t} offen offset:{(n_%4)*1024}')
        if P_ % 2 == 1:
            inc = {15: f's{sJH}', 17: str(16 * 1024), 19: f's{sJH+2}'}.get(P_, '4096')
            o += [f's_add_u32 s{sHt}, s{sHt}, {inc}', f's_add_u32 s{sHt+1}, s{sHt+1}, {inc}']
        return o
    wsch = {1: (0, .0, .6), 2: (1, .3, 2.4), 3: (2.5, 0, 4.2), 4: (4.3, 0, 5.8)}
    hsch = {1: (0, .62, .9), 2: (1, .0, 1.3), 3: (2.0, 0, 2.4), 4: (2.8, 0, 3.3), 5: (3.5, 0, 4.0), 6: (4.1, 0, 4.6), 7: (4.7, 0, 5.2), 8: (5.3, 0, 5.8), 9: (5.85, 0, 5.98)}
    wsch.update(opt.get('wsch', {})); hsch.update(opt.get('hsch', {}))
    def fp(x): return pp(int(x), x - int(x))
    for stg in range(1, 11):
        if stg in wsch:
            a, fa, b = wsch[stg]; lo, hi = fp(a + fa) + 1, fp(b)
        else:
            lo, hi = pp(2 * (stg - 2), 0.0) + 1, pp(2 * (stg - 2) + 1, 0.8)
        if stg >= 2: lo = max(lo, barp.get(stg - 2, -1) + 1)
        assert hi < barp[stg]
        S.place(dma_group(stg), lo, hi)
    last = -1
    for P_ in range(1, NPAIR):
        if P_ in hsch:
            a, fa, b = hsch[P_]; lo, hi = fp(a + fa) + 1, fp(b)
        else:
            q = P_ - (HD - 1); lo, hi = pp(q, 0.0) + 1, pp(q, 0.95)
        if P_ >= HD: assert lo > pp(P_ - HD + 1, 0.0)
        lo = max(lo, last); hi = max(hi, lo)
        last = S.place(h_group(P_), lo, hi)
    cur = -1
    for f in range(9):
        for t in range(2):
            u = 17 * 9 + f
            dn = units[u][2] + 2 * t + 1
            nx = units[u + 9][2] + 2 * t
            lo = max(cur, dn + 4)
            cur = S.place([f'v_mul_f32 v{acc(t,f)+r}, v{acc(t,f)+r}, v{vG+t}' for r in range(4)], lo, min(lo + 3, nx - 3))
            assert cur < nx - 1
    if diag:
        for k in range(1, 21): S.at(pp(k, 0), st.take(f'p{k}'))
        S.at(NP - 1, st.take('mend'))
    P = ['s_cmp_ge_u32 s2, 256', 's_cbranch_scc1 L_k2_end'] + st.take('start')
    P += ['s_load_dwordx4 s[16:19], s[0:1], 64', 's_load_dwordx2 s[20:21], s[0:1], 80',
          'v_lshrrev_b32 v1, 6, v0', f'v_and_b32 v{vS}, 63, v0', f'v_readfirstlane_b32 s{sW}, v1',
          f's_and_b32 s{sKQ}, s2, 3', f's_bfe_u32 s{sR}, s2, 0x10002', f's_lshl_b32 s{sR}, s{sR}, 3', f's_bfe_u32 s{sT0}, s2, 0x30003',
          f's_add_u32 s{sR}, s{sR}, s{sT0}', f's_lshr_b32 s{sCc}, s2, 6', f's_and_b32 s{sPAR}, s{sKQ}, 1', f's_lshr_b32 s{sTK}, s{sKQ}, 1',
          f'v_lshlrev_b32 v{vL16}, 4, v{vS}',
          f's_mul_i32 s{sM0}, s{sW}, 9216',
          f's_lshl_b32 s{sWB}, s{sKQ}, 5', f's_add_u32 s{sWB}, s{sWB}, s{sW}', f's_mul_i32 s{sWB}, s{sWB}, 36',
          f's_mul_i32 s{sT1}, s{sCc}, 9', f's_lshl_b32 s{sT0}, s{sPAR}, 3', f's_add_u32 s{sT1}, s{sT1}, s{sT0}',
          f's_add_u32 s{sWB}, s{sWB}, s{sT1}', f's_lshl_b32 s{sWB}, s{sWB}, 10',
          f's_mul_i32 s{sD0}, s{sPAR}, {u32(-2048)}', f's_add_u32 s{sD1}, s{sD0}, 4096',
          f's_lshl_b32 s{sT0}, s{sR}, 2', f's_add_u32 s{sT0}, s{sT0}, s{sW}', f's_lshl_b32 s{sT0}, s{sT0}, 1',
          f's_add_u32 s{sOt}, s{sT0}, s{sTK}', f's_xor_b32 s{sOt+1}, s{sOt}, 1',
          f's_lshl_b32 s{sT2}, s{sKQ}, 15',
          f's_mul_i32 s{sJH}, s{sKQ}, {u32(-28*1024)}', f's_add_u32 s{sJH}, s{sJH}, {100*1024}', f's_mul_i32 s{sJW}, s{sJH}, 36']
    for t in range(2):
        P += [f's_mul_i32 s{sHt+t}, s{sOt+t}, {HROW}', f's_add_u32 s{sHt+t}, s{sHt+t}, s{sT2}']
    P += ['s_waitcnt lgkmcnt(0)',
          f's_add_u32 s{sWP}, s{pWS}, {WP_OFF}', f's_addc_u32 s{sWP+1}, s{pWS+1}, 0', f's_mov_b32 s{sWP+2}, {WP_BYTES}', f's_mov_b32 s{sWP+3}, 0x00020000']
    P += srd(sWS, pWS, WS_BYTES)
    P += dma_group(0) + h_group(0)
    P += srd(sOUT, pOUT, 2048 * 1152)
    P += [f's_add_u32 s{sWO+1}, s{sKQ}, 160', f's_mul_i32 s{sWO+1}, s{sWO+1}, 36', f's_add_u32 s{sWO+1}, s{sWO+1}, s{sT1}', f's_lshl_b32 s{sWO+1}, s{sWO+1}, 10',
          f's_add_u32 s{sT2}, s{sD0}, 1024', f's_mul_i32 s{sT2}, s{sT2}, s{sW}', f's_mul_i32 s{sT2}, s{sT2}, 3', f's_add_u32 s{sWO+1}, s{sWO+1}, s{sT2}',
          f's_mul_i32 s{sJH+2}, s{sKQ}, {u32(-3*1024)}', f's_add_u32 s{sJH+2}, s{sJH+2}, {16*1024}',
          f's_cmp_ge_u32 s{sKQ}, 2', f's_cselect_b32 s{sJH+2}, {HUGE}, s{sJH+2}', f's_cselect_b32 s{sWO+1}, {HUGE}, s{sWO+1}']
    for t in range(2):
        P += [f's_lshl_b32 s{sGo+t}, s{sOt+t}, 6', f's_add_u32 s{sGo+t}, s{sGo+t}, {G_OFF}']
    P += [f's_mul_i32 s{sOs}, s{sOt}, 18432']
    P += [f'v_and_b32 v{vS+1}, 15, v{vS}', f'v_lshrrev_b32 v{vS+2}, 4, v{vS}', f'v_mul_u32_u24 v{vS+3}, 1152, v{vS+1}',
          f'v_lshl_add_u32 v{vOUT}, v{vS+2}, 3, v{vS+3}', f'v_lshlrev_b32 v{vL4}, 2, v{vS}',
          f'v_lshlrev_b32 v{vS+1}, 2, v{vS+1}']
    for t in range(2):
        P += [f'buffer_load_dword v{vG+t}, v{vS+1}, {sr(sWS)}, s{sGo+t} offen']
    for k in range(4):
        P += [f'v_add_u32 v{vLB+k}, {k*36864}, v{vL16}']
    P += [f's_lshl_b32 s{sT0}, s{sR}, 2', f's_add_u32 s{sT0}, s{sT0}, s{sCc}', f's_lshl_b32 s{sT0}, s{sT0}, 2']
    for d in range(1, 4):
        P += [f's_xor_b32 s{sT2}, s{sKQ}, {d}', f's_add_u32 s{sT2}, s{sT2}, s{sT0}', f's_mul_i32 s{sT2}, s{sT2}, 12', f's_add_u32 s{sT2}, s{sT2}, s{sW}',
              f's_add_u32 s{sT2}, s{sT2}, {4*(d-1)}', f's_mul_i32 s{sXS+d-1}, s{sT2}, 2304', f's_add_u32 s{sXS+d-1}, s{sXS+d-1}, {X_OFF}']
    P += [f's_add_u32 s{sT2}, s{sKQ}, s{sT0}', f's_mul_i32 s{sT2}, s{sT2}, 12', f's_add_u32 s{sT2}, s{sT2}, s{sW}',
          f's_mul_i32 s{sXR}, s{sT2}, 2304', f's_add_u32 s{sXR}, s{sXR}, {X_OFF}',
          f's_mul_i32 s{sT2}, s{sCc}, 288', f's_add_u32 s{sOs}, s{sOs}, s{sT2}',
          f's_lshl_b32 s{sT2}, s{sPAR}, 2', f's_add_u32 s{sOs+4}, s{sOs}, s{sT2}', f's_add_u32 s{sOs+4}, s{sOs+4}, 128',
          f's_lshl_b32 s{sT2}, s{sPAR}, 8', f's_add_u32 s{sOs}, s{sOs}, s{sT2}',
          f's_mul_i32 s{sT2}, s{sPAR}, {u32(-64)}', f's_add_u32 s{sT2}, s{sT2}, 32']
    for k in range(1, 4): P += [f's_add_u32 s{sOs+k}, s{sOs+k-1}, s{sT2}']
    P += [f's_sub_u32 s{mPAR}, 0, s{sPAR}', f's_sub_u32 s{mPAR+1}, 0, s{sPAR}']
    P += pro_tail + st.take('first')
    T = []
    SB = WF
    m = sr(mPAR, 2)
    HK = vS
    a0, a1 = acc(0, 4), acc(1, 4)
    def pack(dst, a): return [f'v_cvt_pk_bf16_f32 v{dst}, v{a}, v{a+1}', f'v_cvt_pk_bf16_f32 v{dst+1}, v{a+2}, v{a+3}']
    send = {1: [(0, 8), (0, 7), (0, 6), (0, 5)], 2: [(1, 0), (1, 1), (1, 2), (1, 3)], 3: [(1, 8), (1, 7), (1, 6), (1, 5)]}
    for d in (2, 3, 1):
        b = SB + 10 * (d - 1)
        for k, (t, f) in enumerate(send[d]):
            T += pack(b + 2 * k, acc(t, f))
            if k % 2 == 1:
                T += [f'buffer_store_dwordx4 {vr(b+2*k-2,4)}, v{vL16}, {sr(sWS)}, s{sXS+d-1} offen offset:{(k//2)*1024} sc1']
    T += pack(SB + 30, a1)
    T += [f'v_cndmask_b32 v{SB+18}, v{SB+30}, v{SB+31}, {m}', f'v_cndmask_b32 v{SB+28}, v{SB+31}, v{SB+30}, {m}']
    T += pack(SB + 30, a0)
    T += [f'v_cndmask_b32 v{SB+8}, v{SB+31}, v{SB+30}, {m}']
    for d in (2, 3, 1):
        T += [f'buffer_store_dword v{SB+10*(d-1)+8}, v{vL4}, {sr(sWS)}, s{sXS+d-1} offen offset:2048 sc1']
    T += [f'v_cndmask_b32 v{HK}, v{a0}, v{a0+2}, {m}', f'v_cndmask_b32 v{HK+1}, v{a0+1}, v{a0+3}, {m}']
    T += st.take('sent')
    T += [f's_mov_b32 s{sT0}, 5000', 'L_k2_recv:', f's_mov_b32 s{sT1}, s{sXR}']
    for d in range(3):
        b = XR + 12 * d
        if d: T += [f's_add_u32 s{sT1}, s{sT1}, {4*2304}']
        T += [f'buffer_load_dwordx4 {vr(b,4)}, v{vL16}, {sr(sWS)}, s{sT1} offen sc1',
              f'buffer_load_dwordx4 {vr(b+4,4)}, v{vL16}, {sr(sWS)}, s{sT1} offen offset:1024 sc1',
              f'buffer_load_dword v{b+8}, v{vL4}, {sr(sWS)}, s{sT1} offen offset:2048 sc1']
    mx = vS + 2
    first = True
    for d in range(3):
        b = XR + 12 * d
        for k in range(0, 9, 2):
            x, y = b + k, b + min(k + 1, 8)
            T += [f'v_max_u32 v{mx}, v{x}, v{y}' if first else f'v_max3_u32 v{mx}, v{x}, v{y}, v{mx}']
            first = False
    T += [f'v_cmp_eq_u32 vcc, -1, v{mx}', f's_sub_u32 s{sT0}, s{sT0}, 1', f's_cmp_eq_u32 s{sT0}, 0', 's_cbranch_scc1 L_k2_got',
          's_nop 2', 's_cbranch_vccnz L_k2_recv', 'L_k2_got:']
    T += st.take('got')
    keep = [acc(0, k) for k in range(4)]
    for k in range(9):
        lo_, hi_ = (keep[k // 2] + 2 * (k % 2), keep[k // 2] + 2 * (k % 2) + 1) if k < 8 else (HK, HK + 1)
        for d in range(3):
            x = XR + 12 * d + k
            T += [f'v_lshlrev_b32 v{vS+2}, 16, v{x}', f'v_and_b32 v{x}, 0xffff0000, v{x}', f'v_add_f32 v{lo_}, v{lo_}, v{vS+2}', f'v_add_f32 v{hi_}, v{hi_}, v{x}']
        if k < 8 and k % 2 == 1:
            a = keep[k // 2]
            T += pack(a, a) + [f'buffer_store_dwordx2 {vr(a,2)}, v{vOUT}, {sr(sOUT)}, s{sOs + k//2} offen']
    T += [f'v_cvt_pk_bf16_f32 v{HK}, v{HK}, v{HK+1}', f'buffer_store_dword v{HK}, v{vOUT}, {sr(sOUT)}, s{sOs+4} offen']
    E = st.take('end') + st.dump(pWS, sW, 1 << 18, 8) + ['L_k2_end:', 's_endpgm']
    P = mk(P)
    res = st.expand(finalize(P + S.linear() + mk(T) + mk(E), 'k2'))
    idx = next(k for k, x in enumerate(res) if x.kind == 'mfma')
    idx2 = max(k for k, x in enumerate(res) if x.kind == 'mfma')
    check_owner(res[:idx2], TEMPS, idx)
    ex, hist, worst = gap_report(res)
    print('[k2] est. exposed filler cycles', ex, hist, worst[:20])
    return kernel_text(name, text(res) + 'L_code_end:\n', HF + 16 * HD, ((HF + 16 * HD + 3) // 4) * 4), st.names


HEADER = open('gated_mix__linear_attn_block__glu_gated_bilinear__prompt.s.ref').read().split('; Override launch')[0]

def build(path, opt):
    k1, n1 = gen_k1('ffn_qkv_kernel', opt)
    k2, n2 = gen_k2('mix_out_kernel', opt)
    s = HEADER
    s += '; @launch kernel=ffn_qkv_kernel grid=(256,1,1) block=(256,1,1) lds=163840\n'
    s += '; @launch kernel=mix_out_kernel grid=(256,1,1) block=(256,1,1) lds=147456\n'
    s += '.amdgcn_target "amdgcn-amd-amdhsa--gfx950"\n' + k1 + k2
    open(path, 'w').write(s)
    return n1, n2

if __name__ == '__main__':
    out = sys.argv[1] if len(sys.argv) > 1 else 'k.s'
    opt = eval(sys.argv[2]) if len(sys.argv) > 2 else {}
    print(build(out, opt))
```
